```python
import torch

def _softmax(x, axis=-1):
    return torch.softmax(x, dim=axis)
def _gelu(x):
    return torch.nn.functional.gelu(x, approximate="tanh")
def _silu(x):
    return torch.nn.functional.silu(x)
def _sigmoid(x):
    return torch.sigmoid(x)
def _layernorm(x, axis=-1, eps=1e-5):
    m = x.mean(dim=axis, keepdim=True)
    v = x.var(dim=axis, keepdim=True, unbiased=False)
    return (x - m) / torch.sqrt(v + eps)
def _scatter_add(tgt, idx, src, axis=0):
    return tgt.clone().index_add_(axis, idx, src)
def _segment_sum(src, seg, n):
    out = torch.zeros((n,) + src.shape[1:], dtype=src.dtype)
    return out.index_add_(0, seg, src)
def _pad(x, pw):
    flat = tuple(v for pair in reversed(pw) for v in pair)
    return torch.nn.functional.pad(x, flat)

kernel_name = 'recurrent_scan__mha_block_cached__glu_gated_swiglu__decode'

def setup_inputs():

    _w = (lambda a: (lambda t: t.to(torch.bfloat16) if t.is_floating_point() else t)(torch.as_tensor(a)))
    def _A_setup():
        B, Sq, D = 4, 1, 512
        H, Sk, Dh = 32, 8192, 128
        return {
            "x": _w((lambda *s: torch.randn(*s, dtype=torch.bfloat16) * 0.2)(B, Sq, D)),
            "k_cache": _w((lambda *s: torch.randn(*s, dtype=torch.bfloat16) * 1.6)(B, H, Sk, Dh)),
            "v_cache": _w((lambda *s: torch.randn(*s, dtype=torch.bfloat16) * 1.6)(B, H, Sk, Dh)),
            "wq": _w((lambda *s: torch.randn(*s, dtype=torch.bfloat16) * 1.6)(D, H * Dh) * (D ** -0.5)),
            "wo": _w((lambda *s: torch.randn(*s, dtype=torch.bfloat16) * 1.6)(H * Dh, D) * ((H * Dh) ** -0.5)),
        }
    _A_in = _A_setup()

    def _B_setup():
        B, S, D, F = 4, 1, 512, 1792
        return {
            "x": _w((lambda *s: torch.randn(*s, dtype=torch.bfloat16) * 0.2)(B, S, D)),
            "w1": _w((lambda *s: torch.randn(*s, dtype=torch.bfloat16) * 0.8)(D, F) * (2.0 / D) ** 0.5),
            "w3": _w((lambda *s: torch.randn(*s, dtype=torch.bfloat16) * 0.8)(D, F) * (2.0 / D) ** 0.5),
            "w2": _w((lambda *s: torch.randn(*s, dtype=torch.bfloat16) * 0.8)(F, D) * (2.0 / F) ** 0.5),
        }
    _B_in = _B_setup()

    return {
        "A_x": _A_in["x"],
        "A_k_cache": _A_in["k_cache"],
        "A_v_cache": _A_in["v_cache"],
        "A_wq": _A_in["wq"],
        "A_wo": _A_in["wo"],
        "B_x": _B_in["x"],
        "B_w1": _B_in["w1"],
        "B_w3": _B_in["w3"],
        "B_w2": _B_in["w2"],
    }

def reference(A_x, A_k_cache, A_v_cache, A_wq, A_wo, B_x, B_w1, B_w3, B_w2):
    def _A_ref(x, k_cache, v_cache, wq, wo):
        B, Sq, D = x.shape
        H, Dh = 32, 128
        q = (lambda x, *d: x.permute(*d))((x @ wq).reshape(B, Sq, H, Dh), 0, 2, 1, 3)
        scores = torch.einsum("bhqd,bhkd->bhqk", q, k_cache) * (Dh ** -0.5)
        p = _softmax(scores, axis=-1)
        o = torch.einsum("bhqk,bhkd->bhqd", p, v_cache)
        return (lambda x, *d: x.permute(*d))(o, 0, 2, 1, 3).reshape(B, Sq, H * Dh) @ wo

    def _B_ref(x, w1, w3, w2):
        gate = torch.einsum("bsd,df->bsf", x, w1)
        up = torch.einsum("bsd,df->bsf", x, w3)
        h = _silu(gate) * up
        out = torch.einsum("bsf,fd->bsd", h, w2)
        return out

    x = A_x
    xn = _layernorm(x, axis=-1)
    s = _A_ref(xn, A_k_cache, A_v_cache, A_wq, A_wo)
    g = _silu(_B_ref(xn, B_w1, B_w3, B_w2))
    return x + s * g
```

```python
import re

TRANS = ("v_exp_f32", "v_log_f32", "v_rcp_f32", "v_rsq_f32", "v_sqrt_f32", "v_sin_f32", "v_cos_f32")

def regs_of(tok):
    tok = tok.strip()
    neg = tok.lstrip('-')
    if neg.startswith('abs(') and neg.endswith(')'): neg = neg[4:-1]
    if neg.startswith('|') and neg.endswith('|'): neg = neg[1:-1]
    m = re.fullmatch(r'([vsa])(\d+)', neg)
    if m: return {(m.group(1), int(m.group(2)))}
    m = re.fullmatch(r'([vsa])\[(\d+):(\d+)\]', neg)
    if m: return {(m.group(1), i) for i in range(int(m.group(2)), int(m.group(3)) + 1)}
    if neg in ('vcc', 'vcc_lo', 'vcc_hi'): return {('vcc', 0)}
    if neg in ('exec', 'exec_lo', 'exec_hi'): return {('exec', 0)}
    if neg == 'm0': return {('m0', 0)}
    return set()

def split_ops(s):
    out, depth, cur = [], 0, ''
    for ch in s:
        if ch in '[(': depth += 1
        if ch in '])': depth -= 1
        if ch == ',' and depth == 0:
            out.append(cur.strip()); cur = ''
        else: cur += ch
    if cur.strip(): out.append(cur.strip())
    return out

class Ins:
    def __init__(self, text):
        self.text = text
        t = text.split(';')[0].strip()
        self.label = None; self.mn = None
        self.defs = set(); self.uses = set(); self.ws = 1
        self.kind = 'other'
        if not t or t.startswith('.'):
            self.kind = 'none'; self.ws = 0; return
        if t.endswith(':'):
            self.kind = 'label'; self.label = t[:-1]; self.ws = 0; return
        parts = t.split(None, 1)
        mn = parts[0]; self.mn = mn
        rest = parts[1] if len(parts) > 1 else ''
        ops = split_ops(rest)
        mods = ''
        if ops:
            last = ops[-1].split(None, 1)
            ops[-1] = last[0]
            mods = last[1] if len(last) > 1 else ''
        self.ops = ops; self.mods = mods
        R = [regs_of(o) for o in ops]
        self.dpp = mn.endswith('_dpp')
        self.srcC = set(); self.srcAB = set(); self.lanesel = set(); self.stdata = set()
        if mn == 's_nop':
            self.kind = 'nop'; self.ws = int(ops[0], 0) + 1
        elif mn.startswith('v_mfma'):
            self.kind = 'mfma'; self.defs = R[0]; self.srcAB = R[1] | R[2]; self.srcC = R[3]; self.uses = self.srcAB | self.srcC
            assert '16x16x32' in mn or '16x16x16' in mn, mn
        elif mn.startswith('v_'):
            self.kind = 'valu'
            self.defs = set(R[0]); self.uses = set().union(*R[1:]) if len(R) > 1 else set()
            base = mn.replace('_dpp', '').replace('_e32', '').replace('_e64', '')
            if base.startswith('v_fmac') or base.startswith('v_dot2c') or base.startswith('v_writelane') or self.dpp:
                self.uses |= R[0]
            if base.startswith('v_permlane'):
                self.defs = R[0] | R[1]; self.uses = R[0] | R[1]
            if base in ('v_add_co_u32', 'v_addc_co_u32', 'v_sub_co_u32'):
                self.defs |= R[1]
            if base.startswith('v_cmpx'): self.defs |= {('exec', 0)}
            if base in ('v_readlane_b32', 'v_writelane_b32'): self.lanesel = R[2]
            self.base = base
        elif mn.startswith('buffer_') or mn.startswith('global_'):
            self.kind = 'vmem'
            lds = ' lds' in (' ' + mods)
            self.ldsdma = lds
            if 'load' in mn and not lds:
                self.defs = R[0]; self.uses = set().union(*R[1:])
                if 'd16' in mn: self.uses |= R[0]
            else:
                self.uses = set().union(*R)
                if 'atomic' in mn and 'sc0' in mods: self.defs = R[0]
                if 'store' in mn and ('x3' in mn or 'x4' in mn): self.stdata = R[0] if mn.startswith('buffer_') else R[1]
        elif mn.startswith('ds_'):
            self.kind = 'ds'
            if mn.startswith('ds_read') or 'rtn' in mn or 'permute' in mn or 'swizzle' in mn:
                self.defs = R[0]; self.uses = set().union(*R[1:])
            else:
                self.uses = set().union(*R)
        elif mn.startswith('s_'):
            self.kind = 'salu'
            if mn.startswith('s_cbranch') or mn == 's_branch':
                self.kind = 'branch'; self.target = ops[0]
            elif mn.startswith('s_cmp') or mn.startswith('s_bitcmp') or mn in ('s_waitcnt', 's_barrier', 's_endpgm', 's_sleep', 's_setprio'):
                self.uses = set().union(*R) if R else set()
            else:
                self.defs = set(R[0]) if R else set(); self.uses = set().union(*R[1:]) if len(R) > 1 else set()
                if 'saveexec' in mn: self.defs |= {('exec', 0)}

def vset(s): return {r for r in s if r[0] in 'va'}
def sset(s): return {r for r in s if r[0] in ('s', 'vcc')}

def need(P, C):
    n = 0
    if P.kind == 'valu':
        dv = vset(P.defs); ds_ = sset(P.defs)
        if dv:
            if C.kind == 'valu' and C.dpp and dv & C.uses: n = max(n, 2)
            if C.kind == 'mfma' and dv & C.uses: n = max(n, 2)
            if P.base in TRANS and C.kind == 'valu' and dv & C.uses: n = max(n, 1)
            if C.kind == 'valu' and C.base in ('v_readlane_b32', 'v_readfirstlane_b32') and dv & C.uses: n = max(n, 1)
            if C.kind == 'valu' and C.base.startswith('v_permlane') and dv & C.uses: n = max(n, 2)
        if ds_:
            if C.kind == 'valu' and ds_ & C.uses: n = max(n, 2)
            if C.kind == 'valu' and ds_ & C.lanesel: n = max(n, 4)
            if C.kind == 'vmem' and ds_ & C.uses: n = max(n, 5)
            if C.kind == 'salu' and ds_ & C.uses: n = max(n, 1)
        if ('exec', 0) in P.defs and C.kind in ('valu', 'mfma'): n = max(n, 5)
    if P.kind == 'mfma':
        D = P.defs
        if C.kind == 'mfma':
            if D & C.srcAB: n = max(n, 8)
            if D & C.srcC and D != C.srcC: n = max(n, 6)
            if D & C.defs and D != C.srcC: n = max(n, 8)
        elif C.kind in ('valu', 'vmem', 'ds'):
            if D & (C.uses | C.defs): n = max(n, 8)
        if C.kind == 'valu' and P.srcC & C.defs: n = max(n, 3)
    if P.kind == 'salu' and ('m0', 0) in P.defs and C.kind == 'vmem' and getattr(C, 'ldsdma', False): n = max(n, 1)
    if P.kind == 'vmem' and P.stdata and P.stdata & C.defs: n = max(n, 2)
    return n

MAXW = 8
def hazard_pass(lines):
    ins = [Ins(l) for l in lines]
    total = 0
    def maps():
        labels = {x.label: i for i, x in enumerate(ins) if x.kind == 'label'}
        brs = {}
        for i, x in enumerate(ins):
            if x.kind == 'branch':
                assert x.target in labels, x.text
                brs.setdefault(labels[x.target], []).append(i)
        return brs
    changed = True
    while changed:
        changed = False
        brs = maps()
        def preds(i):
            out = []
            if i > 0:
                p = ins[i - 1]
                if not (p.mn in ('s_branch', 's_endpgm')): out.append(i - 1)
            if ins[i].kind == 'label': out += brs.get(i, [])
            return out
        i = 0
        while i < len(ins):
            C = ins[i]
            if C.kind in ('none', 'label', 'nop'):
                i += 1; continue
            worst = 0
            stack = [(p, 0) for p in preds(i)]; seen = set()
            while stack:
                j, dist = stack.pop()
                if (j, dist) in seen or dist >= MAXW: continue
                seen.add((j, dist))
                P = ins[j]
                if P.kind not in ('none', 'label', 'nop'):
                    worst = max(worst, need(P, C) - dist)
                for p in preds(j): stack.append((p, dist + P.ws))
            if worst > 0:
                ins.insert(i, Ins(f"  s_nop {worst-1}")); total += worst
                changed = True
                brs = maps()
                i += 1
            i += 1
    return [x.text for x in ins], total

class Asm:
    def __init__(self): self.lines = []; self._n = 0
    def __call__(self, s):
        for l in s.split('\n'):
            l = l.rstrip()
            if not l.strip(): continue
            st = l.strip()
            self.lines.append(st if (st.endswith(':') or st.startswith('.')) else '  ' + st)
    def label(self, base='L'):
        self._n += 1; return f"{base}_{self._n}"
    def finish(self):
        return hazard_pass(self.lines)
```

```python
import sys, struct
from asmlib import Asm

NAME = "recurrent_scan__mha_block_cached__glu_gated_swiglu__decode"
def f2u(x): return struct.unpack('<I', struct.pack('<f', x))[0]
LOG2E = f2u(1.4426950408889634)
SCALE = f2u(128 ** -0.5)
DPPF = "row_mask:0xf bank_mask:0xf"

L_XN, L_QP, L_ST, L_F, L_O, L_G, L_G1, L_G2, L_AL, L_P, L_END = 0, 4096, 6144, 6208, 6656, 7680, 9216, 25600, 32768, 49152, 114688
W_ACC, W_CNT, W_ST, W_H, W_GP, W_END = 0, 8192, 10240, 16384, 32768, 98304
SPIN = 40000

def gen(LI=4, kvflags="nt", wflags="", QG=2, stamps=False, korder='round', name=NAME, debug=False):
    NI = 16
    a = Asm()
    K = f"{name}_kernel"
    def wave_reduce(op, v, sdst, quads=True):
        if quads:
            a(f"{op}_dpp {v}, {v}, {v} quad_perm:[1,0,3,2] {DPPF}")
            a(f"{op}_dpp {v}, {v}, {v} quad_perm:[2,3,0,1] {DPPF}")
        a(f"{op}_dpp {v}, {v}, {v} row_half_mirror {DPPF}")
        a(f"{op}_dpp {v}, {v}, {v} row_mirror {DPPF}")
        a(f"{op}_dpp {v}, {v}, {v} row_bcast:15 row_mask:0xa bank_mask:0xf")
        a(f"{op}_dpp {v}, {v}, {v} row_bcast:31 row_mask:0xc bank_mask:0xf")
        a(f"v_readlane_b32 {sdst}, {v}, 63")
    def srd(d, lo, off, size):
        if off:
            a(f"s_add_u32 s{d}, s{lo}, {off}"); a(f"s_addc_u32 s{d+1}, s{lo+1}, 0")
        else:
            a(f"s_mov_b32 s{d}, s{lo}"); a(f"s_mov_b32 s{d+1}, s{lo+1}")
        a(f"s_mov_b32 s{d+2}, {size}"); a(f"s_mov_b32 s{d+3}, 0x20000")
    def rnd(v, t=None):
        a(f"v_cvt_pk_bf16_f32 {v}, {v}, {v}"); a(f"v_and_b32 {v}, 0xffff0000, {v}")
    def silu(v, t):
        a(f"v_mul_f32 {t}, {hex(LOG2E | 0x80000000)}, {v}")
        a(f"v_exp_f32 {t}, {t}")
        a(f"v_add_f32 {t}, 1.0, {t}")
        a(f"v_rcp_f32 {t}, {t}")
        a(f"v_mul_f32 {v}, {v}, {t}")
    def masks(m0, lane, t1, t2):
        a(f"v_and_b32 {t1}, 1, {lane}")
        a(f"v_lshlrev_b32 {t1}, 4, {t1}")
        a(f"v_mov_b32 {t2}, 0xffff")
        a(f"v_lshlrev_b32 {t1}, {t1}, {t2}")
        a(f"v_bfe_u32 {t2}, {lane}, 1, 3")
        for jj in range(4):
            a(f"v_cmp_eq_u32 vcc, {jj}, {t2}")
            a(f"v_cndmask_b32 v{m0+jj}, 0, {t1}, vcc")
    def layernorm(X, E, T, ldsaddr, ldsoff):
        for i in range(4):
            a(f"v_lshlrev_b32 v{E+2*i}, 16, v{X+i}")
            a(f"v_and_b32 v{E+2*i+1}, 0xffff0000, v{X+i}")
        a(f"v_add_f32 v{T}, v{E}, v{E+1}"); a(f"v_add_f32 v{T+1}, v{E+2}, v{E+3}")
        a(f"v_add_f32 v{T+2}, v{E+4}, v{E+5}"); a(f"v_add_f32 v{T}, v{T}, v{T+1}")
        a(f"v_add_f32 v{T+1}, v{E+6}, v{E+7}"); a(f"v_add_f32 v{T}, v{T}, v{T+2}")
        a(f"v_add_f32 v{T}, v{T}, v{T+1}")
        wave_reduce("v_add_f32", f"v{T}", "s70")
        a(f"v_mov_b32 v{T+1}, s70")
        a(f"v_mul_f32 v{T+1}, {hex(f2u(1/512))}, v{T+1}")
        a(f"v_sub_f32 v{T+2}, v{E}, v{T+1}")
        a(f"v_mul_f32 v{T}, v{T+2}, v{T+2}")
        for i in range(1, 8):
            a(f"v_sub_f32 v{T+2}, v{E+i}, v{T+1}")
            a(f"v_fmac_f32 v{T}, v{T+2}, v{T+2}")
        wave_reduce("v_add_f32", f"v{T}", "s70")
        rnd(f"v{T+1}")
        a(f"v_mov_b32 v{T}, s70")
        a(f"v_mul_f32 v{T}, {hex(f2u(1/512))}, v{T}")
        rnd(f"v{T}")
        a(f"v_add_f32 v{T}, {hex(f2u(1e-5))}, v{T}")
        rnd(f"v{T}")
        a(f"v_sqrt_f32 v{T}, v{T}")
        rnd(f"v{T}")
        a(f"v_rcp_f32 v{T}, v{T}")
        for i in range(8):
            a(f"v_sub_f32 v{E+i}, v{E+i}, v{T+1}")
        for i in range(4):
            a(f"v_cvt_pk_bf16_f32 v{X+i}, v{E+2*i}, v{E+2*i+1}")
        for i in range(4):
            a(f"v_lshlrev_b32 v{E+2*i}, 16, v{X+i}")
            a(f"v_and_b32 v{E+2*i+1}, 0xffff0000, v{X+i}")
        for i in range(8):
            a(f"v_mul_f32 v{E+i}, v{E+i}, v{T}")
        for i in range(4):
            a(f"v_cvt_pk_bf16_f32 v{X+i}, v{E+2*i}, v{E+2*i+1}")
        a(f"ds_write_b128 {ldsaddr}, v[{X}:{X+3}] offset:{ldsoff}")
    def poll(load, vreg, cmp_ok, sleep=24):
        L = a.label("poll"); D = a.label("polld")
        a(f"s_mov_b32 s72, {SPIN}")
        a(f"{L}:")
        a(load)
        a("s_waitcnt vmcnt(0)")
        a(f"v_readfirstlane_b32 s71, {vreg}")
        a(cmp_ok)
        a(f"s_cbranch_scc1 {D}")
        a("s_sub_u32 s72, s72, 1")
        a("s_cmp_eq_u32 s72, 0")
        a(f"s_cbranch_scc1 {D}")
        a(f"s_sleep {sleep}")
        a(f"s_branch {L}")
        a(f"{D}:")
    nst = [0]
    def stamp(k):
        if stamps: a(f"s_memrealtime s[{76+2*k}:{77+2*k}]")
    def dump_stamps(n):
        if not stamps: return
        a("s_waitcnt lgkmcnt(0)")
        a("s_add_u32 s40, s38, 0x20000000"); a("s_addc_u32 s41, s39, 0"); a("s_mov_b32 s42, 0x100000"); a("s_mov_b32 s43, 0x20000")
        a("s_lshl_b32 s70, s2, 4"); a("s_add_u32 s70, s70, s3"); a("s_lshl_b32 s70, s70, 6"); a("s_add_u32 s70, s70, 65536")
        a("s_mov_b64 exec, 1")
        a("v_mov_b32 v2, 0")
        for k in range(12): a(f"v_mov_b32 v{4+k}, " + (f"s{76+2*k}" if k < n else "0"))
        for k in range(3): a(f"buffer_store_dwordx4 v[{4+4*k}:{7+4*k}], v2, s[40:43], s70 offen offset:{16*k}")
        a("s_lshl_b32 s70, s2, 4")
        a(f"v_mov_b32 v5, s{76+2*(n-1)}")
        a("s_getreg_b32 s71, hwreg(HW_REG_HW_ID)"); a("s_getreg_b32 s72, hwreg(HW_REG_XCC_ID)")
        a("v_mov_b32 v6, s71"); a("v_mov_b32 v7, s72")
        L = a.label("nost")
        a("s_cmp_lg_u32 s3, 0"); a(f"s_cbranch_scc1 {L}")
        a("buffer_store_dwordx4 v[4:7], v2, s[40:43], s70 offen")
        a(f"{L}:")

    a(f"{K}:")
    a("s_cmp_ge_u32 s2, 256")
    a("s_cbranch_scc1 L_end")
    a("s_load_dwordx16 s[16:31], s[0:1], 0")
    a("s_load_dwordx8 s[32:39], s[0:1], 64")
    stamp(0)
    a("v_lshrrev_b32 v2, 6, v0")
    a("v_and_b32 v1, 63, v0")
    a("v_readfirstlane_b32 s3, v2")
    a("s_and_b32 s4, s2, 7")
    a("s_lshr_b32 s5, s2, 3")
    a("s_and_b32 s8, s5, 1")
    a("s_lshr_b32 s6, s5, 3")
    a("s_bfe_u32 s7, s5, 0x20001")
    a("s_lshl_b32 s7, s7, 3")
    a("s_add_u32 s7, s7, s4")
    a("s_lshl_b32 s9, s6, 6")
    a("s_lshl_b32 s10, s7, 1")
    a("s_add_u32 s9, s9, s10")
    a("s_add_u32 s9, s9, s8")
    a("v_lshlrev_b32 v2, 4, v1")
    a("s_cmp_lt_u32 s3, 4")
    a("s_cbranch_scc1 L_helper")

    KB, VB = 80, 144
    a("s_sub_u32 s11, s3, 4")
    a("v_lshrrev_b32 v4, 4, v1")
    a("v_bfe_u32 v5, v1, 2, 2")
    a("v_and_b32 v6, 3, v1")
    a("v_lshlrev_b32 v3, 6, v4")
    a("v_lshl_add_u32 v3, v5, 8, v3")
    a("v_lshl_add_u32 v3, v6, 4, v3")
    a("s_lshl_b32 s10, s9, 20")
    if korder == 'round':
        woff, tstride = 12, 16384
    else:
        woff, tstride = 14, 4096
    a(f"s_lshl_b32 s48, s11, {woff}")
    for t in range(1, 4): a(f"s_add_u32 s{48+t}, s48, {t*tstride}")
    a("s_waitcnt lgkmcnt(0)")
    srd(40, 18, "s10", 0x100000)
    srd(44, 20, "s10", 0x100000)
    def kload(t):
        for j in range(4):
            a(f"buffer_load_dwordx4 v[{KB+16*t+4*j}:{KB+16*t+4*j+3}], v3, s[40:43], s{48+t} offen offset:{1024*j} {kvflags}")
    def vload(t, sreg):
        for j in range(4):
            a(f"buffer_load_dwordx4 v[{VB+16*t+4*j}:{VB+16*t+4*j+3}], v2, s[44:47], s{sreg+t} offen offset:{1024*j} {kvflags}")
    for t in range(4): kload(t)
    for t in range(4): vload(t, 48)
    for t in range(4):
        a(f"s_add_u32 s{48+t}, s{48+t}, 0x10000")
        a(f"s_mov_b32 s{52+t}, s{48+t}")
    a("v_lshlrev_b32 v11, 7, v4")
    a("v_lshl_add_u32 v11, v6, 5, v11")
    a("v_cmp_eq_u32 s[66:67], 0, v5"); a("v_cmp_eq_u32 s[68:69], 1, v5"); a("v_cmp_eq_u32 s[70:71], 2, v5"); a("v_cmp_eq_u32 s[72:73], 3, v5")
    a("v_and_b32 v58, 1, v1"); a("v_cmp_eq_u32 s[62:63], 1, v58")
    a("v_and_b32 v58, 2, v1"); a("v_cmp_eq_u32 s[64:65], 2, v58")
    a("v_and_b32 v58, 15, v1"); a("v_lshlrev_b32 v58, 4, v58"); a("v_lshl_add_u32 v70, v4, 3, v58")
    a("s_lshl_b32 s58, s11, 8"); a("v_add_u32 v70, s58, v70")
    masks(4, "v1", "v58", "v59")
    a(f"s_lshl_b32 s58, s11, 14"); a(f"s_add_u32 s58, s58, {L_P - LI*1024}"); a("v_add_u32 v8, s58, v2")
    a(f"s_lshl_b32 s58, s11, 12"); a(f"s_add_u32 s58, s58, {L_AL - LI*256}"); a("v_lshlrev_b32 v9, 2, v1"); a("v_add_u32 v9, s58, v9")
    a("v_mov_b32 v10, 0")
    for i in range(4): a(f"v_mov_b32 v{12+i}, 0")
    a(f"v_mov_b32 v68, {hex(LOG2E)}")
    a("v_mov_b32 v69, 0xff800000")
    a("s_mov_b32 s57, 0xff800000")
    a(f"s_mov_b32 s60, {hex(SCALE)}")
    a("s_mov_b32 s56, 0")
    stamp(1)
    a("s_barrier")
    stamp(2)
    for hw in range(4):
        a(f"ds_read_b128 v[{32+8*hw}:{35+8*hw}], v11 offset:{L_QP+512*hw}")
        a(f"ds_read_b128 v[{36+8*hw}:{39+8*hw}], v11 offset:{L_QP+512*hw+16}")
    a("s_waitcnt lgkmcnt(4)")
    for i in range(8): a(f"v_add_f32 v{32+i}, v{32+i}, v{40+i}")
    a("s_waitcnt lgkmcnt(0)")
    for i in range(8): a(f"v_add_f32 v{48+i}, v{48+i}, v{56+i}")
    for i in range(8): a(f"v_add_f32 v{32+i}, v{32+i}, v{48+i}")
    for i in range(4): a(f"v_cvt_pk_bf16_f32 v{40+i}, v{32+2*i}, v{33+2*i}")
    for j in range(4):
        for i in range(4): a(f"v_cndmask_b32 v{16+4*j+i}, 0, v{40+i}, s[{66+2*j}:{67+2*j}]")
    a(".p2align 6")
    a("L_loop:")
    a("ds_read_b128 v[52:55], v8")
    a("ds_read_b32 v56, v9")
    a(f"s_cmp_ge_u32 s56, {NI}")
    a("s_cbranch_scc1 L_skipK")
    a(f"s_cmp_eq_u32 s56, {NI-1}")
    a("s_cselect_b32 s42, 0, 0x100000")
    a(f"s_cmp_le_u32 s56, {LI}")
    def sel(t):
        D = 32 + 4 * t
        a(f"v_cndmask_b32 v58, v{D}, v{D+1}, s[62:63]")
        a(f"v_cndmask_b32 v59, v{D+2}, v{D+3}, s[62:63]")
        a(f"v_cndmask_b32 v{48+t}, v58, v59, s[64:65]")
    def red1(t): a(f"v_add_f32_dpp v{48+t}, v{48+t}, v{48+t} quad_perm:[1,0,3,2] {DPPF}")
    def red2(t): a(f"v_add_f32_dpp v{48+t}, v{48+t}, v{48+t} quad_perm:[2,3,0,1] {DPPF}")
    def wait2():
        L = a.label("w")
        a(f"s_cbranch_scc0 {L}"); a("s_waitcnt vmcnt(12)"); a(f"{L}:"); a("s_waitcnt vmcnt(28)")
    for t in range(4):
        wait2()
        D = 32 + 4 * t
        for j in range(4):
            a(f"v_mfma_f32_16x16x32_bf16 v[{D}:{D+3}], v[{KB+16*t+4*j}:{KB+16*t+4*j+3}], v[{16+4*j}:{19+4*j}], " + ("0" if j == 0 else f"v[{D}:{D+3}]"))
        kload(t)
        if t: sel(t - 1)
    for t in range(3): red1(t)
    for t in range(3): red2(t)
    sel(3); red1(3); red2(3)
    for t in (0, 2):
        a(f"v_cvt_pk_bf16_f32 v58, v{48+t}, v{49+t}")
        a(f"v_lshlrev_b32 v{48+t}, 16, v58"); a(f"v_and_b32 v{49+t}, 0xffff0000, v58")
        a(f"v_mul_f32 v{48+t}, s60, v{48+t}"); a(f"v_mul_f32 v{49+t}, s60, v{49+t}")
        a(f"v_cvt_pk_bf16_f32 v58, v{48+t}, v{49+t}")
        a(f"v_lshlrev_b32 v{48+t}, 16, v58"); a(f"v_and_b32 v{49+t}, 0xffff0000, v58")
    a("v_max3_f32 v58, v48, v49, v50")
    a("v_max3_f32 v58, v58, v51, s57")
    wave_reduce("v_max_f32", "v58", "s57", quads=False)
    a("v_mul_f32 v59, s57, v68")
    a("v_sub_f32 v57, v69, v59")
    for t in range(4): a(f"v_fma_f32 v{48+t}, v{48+t}, v68, -v59")
    a("v_exp_f32 v57, v57")
    for t in range(4): a(f"v_exp_f32 v{48+t}, v{48+t}")
    a("v_mov_b32 v69, v59")
    a("v_fma_f32 v10, v10, v57, v48")
    a("v_add_f32 v58, v49, v50")
    a("v_add_f32 v10, v10, v51")
    a("v_add_f32 v10, v10, v58")
    for t in range(4): a(f"v_cvt_pk_bf16_f32 v{48+t}, v{48+t}, v{48+t}")
    a(f"ds_write_b32 v9, v57 offset:{LI*256}")
    a(f"ds_write_b128 v8, v[48:51] offset:{LI*1024}")
    for t in range(4): a(f"s_add_u32 s{48+t}, s{48+t}, 0x10000")
    a(f"s_cmp_lg_u32 s56, {NI-1}")
    a("s_cbranch_scc1 L_skipK")
    wave_reduce("v_add_f32", "v10", "s58", quads=False)
    a("v_mov_b32 v58, v69"); a("v_mov_b32 v59, s58")
    a("s_lshl_b32 s58, s11, 3"); a("v_mov_b32 v11, s58")
    a(f"ds_write_b64 v11, v[58:59] offset:{L_ST}")
    a("s_waitcnt lgkmcnt(0)")
    stamp(3)
    a("s_barrier")
    stamp(4)
    a("L_skipK:")
    a(f"s_cmp_lt_u32 s56, {LI}")
    a("s_cbranch_scc1 L_skipV")
    a(f"s_cmp_eq_u32 s56, {NI+LI-1}")
    a("s_cselect_b32 s46, 0, 0x100000")
    a(f"s_cmp_ge_u32 s56, {NI}")
    a("s_waitcnt lgkmcnt(0)")
    for i in range(4): a(f"v_mul_f32 v{12+i}, v56, v{12+i}")
    def ands(n):
        t, j = divmod(n, 4); A = 60 + 4 * (n & 1)
        for jj in range(4):
            a(f"v_and_b32_dpp v{A+jj}, v{52+t}, v{4+jj} row_newbcast:{4*j} {DPPF}")
    ands(0)
    for t in range(4):
        wait2()
        for j in range(4):
            n = 4 * t + j; A = 60 + 4 * (n & 1)
            if n < 15: ands(n + 1)
            a(f"v_mfma_f32_16x16x32_bf16 v[12:15], v[{A}:{A+3}], v[{VB+16*t+4*j}:{VB+16*t+4*j+3}], v[12:15]")
        vload(t, 52)
    for t in range(4): a(f"s_add_u32 s{52+t}, s{52+t}, 0x10000")
    a("L_skipV:")
    a("v_add_u32 v8, 0x400, v8")
    a("v_add_u32 v9, 0x100, v9")
    a("s_add_u32 s56, s56, 1")
    a(f"s_cmp_lt_u32 s56, {NI+LI}")
    a("s_cbranch_scc1 L_loop")
    a("v_cvt_pk_bf16_f32 v58, v12, v13")
    a("v_cvt_pk_bf16_f32 v59, v14, v15")
    a("s_mov_b32 exec_hi, 0")
    a(f"ds_write_b64 v70, v[58:59] offset:{L_O}")
    a("s_waitcnt lgkmcnt(0)")
    stamp(5)
    a("s_barrier")
    dump_stamps(6)
    a("s_endpgm")

    a("L_helper:")
    WB = 64
    a("v_lshrrev_b32 v3, 4, v1")
    a("v_and_b32 v4, 15, v1")
    a("v_lshlrev_b32 v5, 13, v3")
    a("v_lshl_add_u32 v5, v4, 4, v5")
    a("s_lshl_b32 s10, s7, 8")
    a("s_lshl_b32 s12, s6, 10")
    a("s_lshl_b32 s13, s6, 1"); a("s_add_u32 s13, s13, s8")
    a("s_lshl_b32 s14, s3, 20")
    a("s_waitcnt lgkmcnt(0)")
    srd(44, 16, 0, 4096)
    srd(40, 22, "s10", 0x400000 - 0x1f00)
    a("buffer_load_dwordx4 v[8:11], v2, s[44:47], s12 offen")
    def qgrp(i):
        a(f"s_add_u32 s15, s13, {i}"); a("s_and_b32 s15, s15, 7"); a("s_lshl_b32 s15, s15, 17"); a("s_add_u32 s15, s15, s14")
        for j in range(4):
            if j: a("s_add_u32 s15, s15, 0x8000")
            a(f"buffer_load_dwordx4 v[{WB+16*i+4*j}:{WB+16*i+4*j+3}], v5, s[40:43], s15 offen {wflags}")
    for i in range(QG): qgrp(i)
    masks(12, "v1", "v6", "v7")
    a("v_lshrrev_b32 v6, 2, v4"); a("v_lshlrev_b32 v6, 3, v6"); a("v_lshl_add_u32 v6, v3, 1, v6")
    a("s_lshl_b32 s15, s3, 8"); a("s_add_u32 s15, s15, s12"); a("v_add_u32 v6, s15, v6")
    a("v_add_u32 v7, s12, v2")
    a(f"s_waitcnt vmcnt({4*QG})")
    stamp(1)
    layernorm(8, 16, 24, "v7", L_XN)
    for i in range(8):
        a(f"s_add_u32 s15, s13, {i}"); a("s_and_b32 s15, s15, 7"); a("s_lshl_b32 s15, s15, 5")
        a(f"v_add_u32 v{16+i}, s15, v6")
    a("s_waitcnt lgkmcnt(0)")
    for i in range(8): a(f"ds_read_u16 v{16+i}, v{16+i} offset:{L_XN}")
    a("s_waitcnt lgkmcnt(0)")
    for i in range(8): a(f"v_lshl_or_b32 v{16+i}, v{16+i}, 16, v{16+i}")
    stamp(2)
    def qands(n):
        i, j = divmod(n, 4); A = 24 + 4 * (n & 1)
        for jj in range(4):
            a(f"v_and_b32_dpp v{A+jj}, v{16+i}, v{12+jj} row_newbcast:{4*j} {DPPF}")
    qands(0)
    for i in range(8):
        issued = min(8, i + QG)
        a(f"s_waitcnt vmcnt({4*(issued-1-i)})")
        if i + QG < 8: qgrp(i + QG)
        for j in range(4):
            n = 4 * i + j; A = 24 + 4 * (n & 1)
            if n < 31: qands(n + 1)
            a(f"v_mfma_f32_16x16x32_bf16 v[32:35], v[{A}:{A+3}], v[{WB+16*i+4*j}:{WB+16*i+4*j+3}], " + ("0" if n == 0 else "v[32:35]"))
    a("v_lshlrev_b32 v6, 5, v4"); a("v_lshl_add_u32 v6, v3, 4, v6")
    a("s_lshl_b32 s15, s3, 9"); a("v_add_u32 v6, s15, v6")
    a("s_mov_b32 exec_hi, 0")
    a(f"ds_write_b128 v6, v[32:35] offset:{L_QP}")
    a("s_mov_b64 exec, -1")
    a("s_waitcnt lgkmcnt(0)")
    stamp(3)
    a("s_barrier")
    srd(48, 38, 0, W_END)
    srd(52, 36, 0, 256)
    a("s_cmp_eq_u32 s3, 0"); a("s_cbranch_scc1 L_h0")
    a("s_cmp_eq_u32 s3, 1"); a("s_cbranch_scc1 L_h1")
    a("s_branch L_wo")

    a("L_h0:")
    a("v_mov_b32 v8, 0"); a("v_lshlrev_b32 v9, 2, v1"); a("s_lshl_b32 s15, s2, 6")
    a("s_mov_b64 exec, 0xffff")
    a("buffer_store_dword v8, v9, s[48:51], s15 offen sc1")
    a("s_mov_b64 exec, -1")
    a("s_cmp_ge_u32 s5, 28"); a("s_cbranch_scc1 L_h0done")
    a("s_mul_i32 s15, s4, 28"); a("s_add_u32 s15, s15, s5"); a("s_lshl_b32 s57, s15, 4")
    srd(40, 28, "s57", 512 * 3584 - 3584 + 16)
    srd(56 + 4, 30, "s57", 512 * 3584 - 3584 + 16)
    a("v_mul_u32_u24 v9, 3584, v1")
    for mat in range(2):
        for i in range(8):
            a(f"s_mov_b32 m0, {L_G1 + mat*8192 + i*1024}")
            a(f"s_mov_b32 s15, {i*64*3584}")
            a(f"buffer_load_dwordx4 v9, s[{40 if mat == 0 else 60}:{43 if mat == 0 else 63}], s15 offen {wflags} lds")
    a("s_mov_b32 s58, 0")
    a("L_ln4:")
    a("buffer_load_dwordx4 v[8:11], v2, s[44:47], s58 offen")
    a("v_add_u32 v7, s58, v2")
    a("s_waitcnt vmcnt(0)")
    layernorm(8, 16, 24, "v7", L_XN)
    a("s_add_u32 s58, s58, 1024"); a("s_cmp_lt_u32 s58, 4096"); a("s_cbranch_scc1 L_ln4")
    a("v_lshrrev_b32 v6, 2, v4"); a("v_lshlrev_b32 v8, 10, v6"); a("v_lshl_add_u32 v8, v3, 4, v8")
    a("v_lshlrev_b32 v9, 7, v3"); a("v_lshl_add_u32 v9, v6, 4, v9")
    a("v_bfe_u32 v7, v1, 1, 1"); a("v_lshl_add_u32 v9, v7, 13, v9")
    a("v_and_b32 v7, 1, v1"); a("v_lshl_add_u32 v9, v7, 3, v9")
    a("s_waitcnt lgkmcnt(0)")
    for half in range(4):
        for s in range(4):
            ks = 4 * half + s
            a(f"ds_read_b128 v[{64+8*s}:{67+8*s}], v8 offset:{L_XN + ks*64}")
            a(f"ds_read_b64_tr_b16 v[{68+8*s}:{69+8*s}], v9 offset:{L_G1 + ks*512}")
            a(f"ds_read_b64_tr_b16 v[{70+8*s}:{71+8*s}], v9 offset:{L_G1 + ks*512 + 64}")
        a("s_waitcnt lgkmcnt(0)")
        for s in range(4):
            a(f"v_mfma_f32_16x16x32_bf16 v[32:35], v[{64+8*s}:{67+8*s}], v[{68+8*s}:{71+8*s}], " + ("0" if half == 0 and s == 0 else "v[32:35]"))
    rnd("v32")
    a(f"v_mov_b32_dpp v33, v32 row_ror:8 {DPPF}")
    silu("v32", "v34"); rnd("v32")
    a("v_mul_f32 v32, v32, v33")
    a(f"v_mov_b32_dpp v33, v32 quad_perm:[1,0,3,2] {DPPF}")
    a("v_cvt_pk_bf16_f32 v32, v32, v33")
    a("v_mul_u32_u24 v9, 3584, v3"); a("v_lshl_add_u32 v9, v4, 1, v9")
    a(f"s_add_u32 s15, s57, {W_H}")
    a("s_mov_b32 exec_lo, 0x00550055"); a("s_mov_b32 exec_hi, 0x00550055")
    a("buffer_store_dword v32, v9, s[48:51], s15 offen sc1")
    a("s_mov_b64 exec, -1")
    a("L_h0done:")
    a("s_waitcnt vmcnt(0)")
    a("v_mov_b32 v8, 1"); a("s_lshl_b32 s15, s4, 2")
    a("s_mov_b64 exec, 1")
    a("buffer_atomic_add v8, off, s[52:55], s15 sc1")
    a("s_mov_b64 exec, -1")
    a("s_branch L_wo")

    a("L_h1:")
    a("s_mul_i32 s15, s4, 229376"); a("s_lshl_b32 s57, s5, 5"); a("s_add_u32 s15, s15, s57")
    srd(40, 32, "s15", 223 * 1024 + 32)
    a("v_lshrrev_b32 v9, 1, v1"); a("v_lshlrev_b32 v9, 10, v9"); a("v_and_b32 v7, 1, v1"); a("v_lshl_add_u32 v9, v7, 4, v9")
    for i in range(7):
        a(f"s_mov_b32 m0, {L_G2 + i*1024}")
        a(f"s_mov_b32 s15, {i*32768}")
        a(f"buffer_load_dwordx4 v9, s[40:43], s15 offen {wflags} lds")
    a("s_lshl_b32 s58, s4, 2")
    poll("buffer_load_dword v8, off, s[52:55], s58 sc1", "v8", "s_cmp_ge_u32 s71, 32")
    a("v_lshrrev_b32 v6, 2, v4")
    a("v_mul_u32_u24 v8, 3584, v6"); a("v_lshl_add_u32 v8, v3, 4, v8")
    a(f"s_mul_i32 s15, s4, 448"); a(f"s_add_u32 s15, s15, {W_H}")
    for s in range(7):
        a(f"buffer_load_dwordx4 v[{64+8*s}:{67+8*s}], v8, s[48:51], s15 offen offset:{64*s} sc1")
    a("v_lshlrev_b32 v9, 8, v3"); a("v_lshl_add_u32 v9, v6, 5, v9"); a("v_and_b32 v7, 3, v1"); a("v_lshl_add_u32 v9, v7, 3, v9")
    for s in range(7):
        a(f"ds_read_b64_tr_b16 v[{68+8*s}:{69+8*s}], v9 offset:{L_G2 + s*1024}")
        a(f"ds_read_b64_tr_b16 v[{70+8*s}:{71+8*s}], v9 offset:{L_G2 + s*1024 + 128}")
    a("s_waitcnt vmcnt(0) lgkmcnt(0)")
    for s in range(7):
        a(f"v_mfma_f32_16x16x32_bf16 v[32:35], v[{64+8*s}:{67+8*s}], v[{68+8*s}:{71+8*s}], " + ("0" if s == 0 else "v[32:35]"))
    a("v_lshlrev_b32 v9, 11, v3"); a("v_lshl_add_u32 v9, v4, 2, v9")
    a(f"s_lshl_b32 s15, s4, 13"); a("s_lshl_b32 s57, s5, 6"); a("s_add_u32 s15, s15, s57"); a(f"s_add_u32 s15, s15, {W_GP}")
    a("buffer_store_dword v32, v9, s[48:51], s15 offen sc1")
    a("s_waitcnt vmcnt(0)")
    a("v_mov_b32 v8, 1")
    a("s_mov_b64 exec, 1")
    a("buffer_atomic_add v8, off, s[52:55], 0 offset:128 sc1")
    a("s_mov_b64 exec, -1")
    poll("buffer_load_dword v8, off, s[52:55], 0 offset:128 sc1", "v8", "s_cmp_ge_u32 s71, 256")
    a("v_lshlrev_b32 v9, 5, v1")
    a(f"s_lshl_b32 s15, s6, 11"); a(f"s_add_u32 s15, s15, {W_GP}")
    for sp in range(8):
        if sp: a("s_add_u32 s15, s15, 8192")
        a(f"buffer_load_dwordx4 v[{64+8*sp}:{67+8*sp}], v9, s[48:51], s15 offen sc1")
        a(f"buffer_load_dwordx4 v[{68+8*sp}:{71+8*sp}], v9, s[48:51], s15 offen offset:16 sc1")
    a("s_waitcnt vmcnt(0)")
    for sp in range(1, 8):
        for i in range(8): a(f"v_add_f32 v{64+i}, v{64+i}, v{64+8*sp+i}")
    for i in range(8): rnd(f"v{64+i}")
    for i in range(8): silu(f"v{64+i}", f"v{72+i}")
    for i in range(4): a(f"v_cvt_pk_bf16_f32 v{72+i}, v{64+2*i}, v{65+2*i}")
    a(f"ds_write_b128 v2, v[72:75] offset:{L_G}")

    a("L_wo:")
    stamp(4)
    a("s_lshl_b32 s15, s7, 17")
    srd(40, 24, "s15", 0x20000)
    a("v_lshlrev_b32 v5, 13, v3"); a("v_lshl_add_u32 v5, v4, 4, v5")
    a("s_lshl_b32 s15, s3, 8"); a("v_add_u32 v5, s15, v5")
    a("s_mov_b32 s58, 0x05040100"); a("s_mov_b32 s59, 0x07060302")
    a("v_lshlrev_b32 v6, 4, v4"); a("v_lshl_add_u32 v6, v3, 2, v6"); a("v_add_u32 v6, s15, v6")
    a("buffer_load_dword v10, v6, s[44:47], s12 offen")
    ST = 192
    for s in range(4):
        for j in range(8):
            if j % 4 == 0: a(f"s_mov_b32 s15, {s*32768 + (j//4)*4096}")
            a(f"buffer_load_dwordx4 v[{ST+4*j}:{ST+4*j+3}], v5, s[40:43], s15 offen offset:{(j%4)*1024} {wflags}")
        a("s_waitcnt vmcnt(0)")
        for c in range(4):
            for e in range(2):
                for jj in range(4):
                    a(f"v_perm_b32 v{WB + 32*s + 4*(2*c+e) + jj}, v{ST+4*(2*jj+1)+c}, v{ST+4*(2*jj)+c}, s{58+e}")
    a("v_and_b32 v7, 3, v1"); a("v_lshlrev_b32 v7, 8, v7"); a("v_lshl_add_u32 v7, v3, 4, v7")
    a("v_mov_b32 v8, 0")
    a("v_lshlrev_b32 v9, 2, v1")
    a("v_cmp_eq_u32 s[62:63], 1, v3"); a("v_cmp_eq_u32 s[64:65], 2, v3"); a("v_cmp_eq_u32 s[66:67], 3, v3")
    a("s_lshl_b32 s60, s6, 2"); a("s_add_u32 s60, s60, s3")
    a("s_lshl_b32 s61, s60, 7"); a(f"s_add_u32 s61, s61, {W_CNT}")
    a("s_lshl_b32 s60, s60, 9")
    srd(40, 34, 0, 4096)
    a("s_waitcnt lgkmcnt(0)")
    stamp(5)
    a("s_barrier")
    stamp(6)
    a(f"ds_read_b32 v11, v6 offset:{L_G}")
    a("s_cmp_lg_u32 s3, 2"); a("s_cbranch_scc1 L_b3")
    a(f"ds_read_b128 v[16:19], v8 offset:{L_ST}")
    a(f"ds_read_b128 v[20:23], v8 offset:{L_ST+16}")
    a("s_waitcnt lgkmcnt(0)")
    a("v_max3_f32 v24, v16, v18, v20"); a("v_max_f32 v24, v24, v22")
    for w in range(4): a(f"v_sub_f32 v{28+w}, v{16+2*w}, v24")
    for w in range(4): a(f"v_exp_f32 v{28+w}, v{28+w}")
    a("v_mul_f32 v25, v17, v28")
    for w in range(1, 4): a(f"v_fmac_f32 v25, v{17+2*w}, v{28+w}")
    a(f"s_lshl_b32 s15, s9, 4"); a(f"s_add_u32 s15, s15, {W_ST}")
    a("s_mov_b64 exec, 1")
    a("buffer_store_dwordx2 v[24:25], off, s[48:51], s15 sc1")
    a("s_mov_b64 exec, -1")
    a("s_xor_b32 s15, s15, 16")
    poll("buffer_load_dwordx2 v[26:27], off, s[48:51], s15 sc1", "v27", "s_cmp_lg_u32 s71, 0", sleep=8)
    a("v_max_f32 v16, v24, v26")
    a("v_sub_f32 v17, v24, v16"); a("v_sub_f32 v18, v26, v16")
    a("v_exp_f32 v17, v17"); a("v_exp_f32 v18, v18")
    a("v_mul_f32 v19, v25, v17"); a("v_fmac_f32 v19, v27, v18")
    a("v_rcp_f32 v19, v19")
    a("v_mul_f32 v19, v19, v17")
    for w in range(4): a(f"v_mul_f32 v{28+w}, v{28+w}, v19")
    a(f"ds_write_b128 v8, v[28:31] offset:{L_F}")
    a("L_b3:")
    a("s_waitcnt lgkmcnt(0)")
    a("v_lshlrev_b32 v224, 16, v11"); a("v_and_b32 v225, 0xffff0000, v11")
    a("v_lshlrev_b32 v226, 16, v10"); a("v_and_b32 v227, 0xffff0000, v10")
    a("v_mov_b32 v228, 1")
    stamp(7)
    a("s_barrier")
    stamp(8)
    for s in range(4): a(f"ds_read_b128 v[{16+4*s}:{19+4*s}], v7 offset:{L_O + 64*s}")
    a(f"ds_read_b128 v[12:15], v8 offset:{L_F}")
    def scale(t):
        D = 32 + 4 * t
        a(f"v_mul_f32 v{D}, v{D}, v12")
        for i in range(1, 4): a(f"v_fmac_f32 v{D}, v{D+i}, v{12+i}")
        if t >= 2:
            a(f"v_cndmask_b32 v{32+4*(t&1)}, v{32+4*(t&1)}, v{D}, s[{60+2*(t>>1)}:{61+2*(t>>1)}]")
    for t in range(8):
        D = 32 + 4 * t
        for s in range(4):
            if t == 0: a(f"s_waitcnt lgkmcnt({4-s})")
            B = WB + 32 * s + 4 * t
            a(f"v_mfma_f32_16x16x32_bf16 v[{D}:{D+3}], v[{16+4*s}:{19+4*s}], v[{B}:{B+3}], " + ("0" if s == 0 else f"v[{D}:{D+3}]"))
        if t == 1: a("s_waitcnt lgkmcnt(0)")
        if t >= 2: scale(t - 2)
    scale(6); scale(7)
    a(f"buffer_atomic_add_f32 v32, v9, s[48:51], s60 offen sc1")
    a(f"buffer_atomic_add_f32 v36, v9, s[48:51], s60 offen offset:256 sc1")
    a("s_waitcnt vmcnt(0)")
    stamp(9)
    a("s_mov_b64 exec, 1")
    a("buffer_atomic_add v228, off, s[48:51], s61 sc0 sc1")
    a("s_mov_b64 exec, -1")
    a("s_waitcnt vmcnt(0)")
    a("v_readfirstlane_b32 s15, v228")
    stamp(10)
    a("s_cmp_lg_u32 s15, 63")
    a("s_cbranch_scc1 L_hend")
    a("buffer_load_dword v32, v9, s[48:51], s60 offen sc1")
    a("buffer_load_dword v33, v9, s[48:51], s60 offen offset:256 sc1")
    a("s_waitcnt vmcnt(0)")
    a("v_cvt_pk_bf16_f32 v34, v32, v33")
    a("v_lshlrev_b32 v32, 16, v34"); a("v_and_b32 v33, 0xffff0000, v34")
    a("v_mul_f32 v32, v32, v224"); a("v_mul_f32 v33, v33, v225")
    a("v_cvt_pk_bf16_f32 v34, v32, v33")
    a("v_lshlrev_b32 v32, 16, v34"); a("v_and_b32 v33, 0xffff0000, v34")
    a("v_add_f32 v32, v32, v226"); a("v_add_f32 v33, v33, v227")
    a("v_cvt_pk_bf16_f32 v34, v32, v33")
    a("buffer_store_dword v34, v6, s[40:43], s12 offen")
    a("L_hend:")
    if stamps:
        a("s_waitcnt vmcnt(0)")
        stamp(11)
        dump_stamps(12)
    a("L_end:")
    a("s_endpgm")
    body, nops = a.finish()
    return body, nops

HEADER = open('cdna_kernels/' + NAME + '.s.ref').read().split('; Override')[0]

def write(path, name=NAME, **kw):
    body, nops = gen(name=name, **kw)
    K = f"{name}_kernel"
    txt = HEADER + f"; @launch grid=(256,1,1) block=(512,1,1) lds={L_END}\n"
    txt += f'.amdgcn_target "amdgcn-amd-amdhsa--gfx950"\n.text\n.globl {K}\n.p2align 8\n.type {K},@function\n'
    txt += "\n".join(body) + "\n"
    txt += f'''.section .rodata,"a"
.p2align 6
.amdhsa_kernel {K}
  .amdhsa_next_free_vgpr 232
  .amdhsa_next_free_sgpr 102
  .amdhsa_accum_offset 232
  .amdhsa_group_segment_fixed_size 0
  .amdhsa_kernarg_size 96
  .amdhsa_user_sgpr_count 2
  .amdhsa_user_sgpr_kernarg_segment_ptr 1
  .amdhsa_system_sgpr_workgroup_id_x 1
  .amdhsa_float_denorm_mode_32 3
.end_amdhsa_kernel
'''
    open(path, 'w').write(txt)
    print(f"wrote {path}: {len(body)} lines, {nops} nop states inserted")

if __name__ == "__main__":
    kw = eval("dict(" + (sys.argv[2] if len(sys.argv) > 2 else "") + ")")
    write(sys.argv[1] if len(sys.argv) > 1 else f"cdna_kernels/{NAME}.s", **kw)
```

```python
import sys, struct
from asmlib import Asm

NAME = "recurrent_scan__mha_block_cached__glu_gated_swiglu__decode"
def f2u(x): return struct.unpack('<I', struct.pack('<f', x))[0]
LOG2E = f2u(1.4426950408889634)
SCALE = f2u(128 ** -0.5)
DPPF = "row_mask:0xf bank_mask:0xf"

L_XN, L_QP, L_ST, L_F, L_O, L_G, L_G1, L_G2, L_AL, L_P, L_END = 0, 4096, 6144, 6208, 6656, 7680, 9216, 25600, 33024, 50432, 116992
L_IT, L_SC = 6240, 6244
W_ACC, W_CNT, W_ST, W_H, W_GP, W_END = 0, 8192, 16384, 32768, 49152, 114688
SPIN = 40000

def gen(D=5, DV=None, DQ=10, A0=28, BQ=24, AG=4, kvflags='nt', wflags='nt', GW=0, G2=20, WOB=1, G1B=1, G0=0, pf=0,
        abl=(), itst=False, stamps=False, name=NAME):
    DV = DV or D
    assert D <= 7 and DV <= 7
    NI = 16
    a = Asm()
    K = f"{name}_kernel"
    def wave_reduce(op, v, sdst, quads=True):
        if quads:
            a(f"{op}_dpp {v}, {v}, {v} quad_perm:[1,0,3,2] {DPPF}")
            a(f"{op}_dpp {v}, {v}, {v} quad_perm:[2,3,0,1] {DPPF}")
        a(f"{op}_dpp {v}, {v}, {v} row_half_mirror {DPPF}")
        a(f"{op}_dpp {v}, {v}, {v} row_mirror {DPPF}")
        a(f"{op}_dpp {v}, {v}, {v} row_bcast:15 row_mask:0xa bank_mask:0xf")
        a(f"{op}_dpp {v}, {v}, {v} row_bcast:31 row_mask:0xc bank_mask:0xf")
        a(f"v_readlane_b32 {sdst}, {v}, 63")
    def srd(d, lo, off, size):
        if off:
            a(f"s_add_u32 s{d}, s{lo}, {off}"); a(f"s_addc_u32 s{d+1}, s{lo+1}, 0")
        else:
            a(f"s_mov_b32 s{d}, s{lo}"); a(f"s_mov_b32 s{d+1}, s{lo+1}")
        a(f"s_mov_b32 s{d+2}, {size}"); a(f"s_mov_b32 s{d+3}, 0x20000")
    def rnd(v):
        a(f"v_cvt_pk_bf16_f32 {v}, {v}, {v}"); a(f"v_and_b32 {v}, 0xffff0000, {v}")
    def silu(v, t):
        a(f"v_mul_f32 {t}, {hex(LOG2E | 0x80000000)}, {v}")
        a(f"v_exp_f32 {t}, {t}")
        a(f"v_add_f32 {t}, 1.0, {t}")
        a(f"v_rcp_f32 {t}, {t}")
        a(f"v_mul_f32 {v}, {v}, {t}")
    def masks(m0, lane, t1, t2):
        a(f"v_and_b32 {t1}, 1, {lane}")
        a(f"v_lshlrev_b32 {t1}, 4, {t1}")
        a(f"v_mov_b32 {t2}, 0xffff")
        a(f"v_lshlrev_b32 {t1}, {t1}, {t2}")
        a(f"v_bfe_u32 {t2}, {lane}, 1, 3")
        for jj in range(4):
            a(f"v_cmp_eq_u32 vcc, {jj}, {t2}")
            a(f"v_cndmask_b32 v{m0+jj}, 0, {t1}, vcc")
    def layernorm(X, E, T, ldsaddr, ldsoff):
        start = len(a.lines)
        for i in range(4):
            a(f"v_lshlrev_b32 v{E+2*i}, 16, v{X+i}")
            a(f"v_and_b32 v{E+2*i+1}, 0xffff0000, v{X+i}")
        a(f"v_add_f32 v{T}, v{E}, v{E+1}"); a(f"v_add_f32 v{T+1}, v{E+2}, v{E+3}")
        a(f"v_add_f32 v{T+2}, v{E+4}, v{E+5}"); a(f"v_add_f32 v{T}, v{T}, v{T+1}")
        a(f"v_add_f32 v{T+1}, v{E+6}, v{E+7}"); a(f"v_add_f32 v{T}, v{T}, v{T+2}")
        a(f"v_add_f32 v{T}, v{T}, v{T+1}")
        wave_reduce("v_add_f32", f"v{T}", "s70")
        a(f"v_mov_b32 v{T+1}, {hex(f2u(1/512))}")
        a(f"v_mul_f32 v{T+1}, s70, v{T+1}")
        a(f"v_sub_f32 v{T+2}, v{E}, v{T+1}")
        a(f"v_sub_f32 v{T+3}, v{E+1}, v{T+1}")
        a(f"v_mul_f32 v{T}, v{T+2}, v{T+2}")
        a(f"v_mul_f32 v{X}, v{T+3}, v{T+3}")
        for i in range(2, 8, 2):
            a(f"v_sub_f32 v{T+2}, v{E+i}, v{T+1}")
            a(f"v_sub_f32 v{T+3}, v{E+i+1}, v{T+1}")
            a(f"v_fmac_f32 v{T}, v{T+2}, v{T+2}")
            a(f"v_fmac_f32 v{X}, v{T+3}, v{T+3}")
        a(f"v_add_f32 v{T}, v{T}, v{X}")
        rnd(f"v{T+1}")
        steps = [f"v_add_f32_dpp v{T}, v{T}, v{T} quad_perm:[1,0,3,2] {DPPF}", f"v_add_f32_dpp v{T}, v{T}, v{T} quad_perm:[2,3,0,1] {DPPF}",
                 f"v_add_f32_dpp v{T}, v{T}, v{T} row_half_mirror {DPPF}", f"v_add_f32_dpp v{T}, v{T}, v{T} row_mirror {DPPF}",
                 f"v_add_f32_dpp v{T}, v{T}, v{T} row_bcast:15 row_mask:0xa bank_mask:0xf", f"v_add_f32_dpp v{T}, v{T}, v{T} row_bcast:31 row_mask:0xc bank_mask:0xf",
                 f"v_readlane_b32 s70, v{T}, 63"]
        fill = [f"v_sub_f32 v{E+i}, v{E+i}, v{T+1}" for i in range(8)]
        fill += [f"v_cvt_pk_bf16_f32 v{X+i}, v{E+2*i}, v{E+2*i+1}" for i in range(4)]
        fill2 = []
        for i in range(4):
            fill2 += [f"v_lshlrev_b32 v{E+2*i}, 16, v{X+i}", f"v_and_b32 v{E+2*i+1}, 0xffff0000, v{X+i}"]
        fill += fill2
        for st in steps:
            a(st)
            for _ in range(2):
                if fill: a(fill.pop(0))
        a(f"v_mov_b32 v{T}, {hex(f2u(1/512))}")
        a(f"v_mul_f32 v{T}, s70, v{T}")
        rnd(f"v{T}")
        a(f"v_add_f32 v{T}, {hex(f2u(1e-5))}, v{T}")
        rnd(f"v{T}")
        a(f"v_sqrt_f32 v{T}, v{T}")
        if fill: a(fill.pop(0))
        rnd(f"v{T}")
        a(f"v_rcp_f32 v{T}, v{T}")
        for f in fill: a(f)
        for i in range(8):
            a(f"v_mul_f32 v{E+i}, v{E+i}, v{T}")
        for i in range(4):
            a(f"v_cvt_pk_bf16_f32 v{X+i}, v{E+2*i}, v{E+2*i+1}")
        a(f"ds_write_b128 {ldsaddr}, v[{X}:{X+3}] offset:{ldsoff}")
        out = a.lines[start:]; del a.lines[start:]
        return out
    def spin(load, wait, vreg, cmp_ok, sleep):
        L = a.label("spin"); D = a.label("spun")
        a(f"s_mov_b32 s72, {SPIN}")
        a(f"{L}:")
        a(load)
        a(wait)
        a(f"v_readfirstlane_b32 s71, {vreg}")
        a(cmp_ok)
        a(f"s_cbranch_scc1 {D}")
        a("s_sub_u32 s72, s72, 1")
        a("s_cmp_eq_u32 s72, 0")
        a(f"s_cbranch_scc1 {D}")
        a(f"s_sleep {sleep}")
        a(f"s_branch {L}")
        a(f"{D}:")
    def poll(load, vreg, cmp_ok, sleep=127):
        spin(load, "s_waitcnt vmcnt(0)", vreg, cmp_ok, sleep)
    def gate(n, word=L_IT, sleep=16):
        if n <= 0: return
        spin(f"ds_read_b32 v11, v8 offset:{word}", "s_waitcnt lgkmcnt(0)", "v11", f"s_cmp_ge_u32 s71, {n}", sleep)
    def stamp(k):
        if stamps: a(f"s_memrealtime s[{76+2*k}:{77+2*k}]")
    def dump_stamps(n):
        if not stamps: return
        a("s_waitcnt lgkmcnt(0)")
        a("s_add_u32 s40, s38, 0x20000000"); a("s_addc_u32 s41, s39, 0"); a("s_mov_b32 s42, 0x100000"); a("s_mov_b32 s43, 0x20000")
        a("s_lshl_b32 s70, s2, 4"); a("s_add_u32 s70, s70, s3"); a("s_lshl_b32 s70, s70, 6"); a("s_add_u32 s70, s70, 65536")
        a("s_mov_b64 exec, 1")
        a("v_mov_b32 v2, 0")
        for k in range(12): a(f"v_mov_b32 v{4+k}, " + (f"s{76+2*k}" if k < n else "0"))
        for k in range(3): a(f"buffer_store_dwordx4 v[{4+4*k}:{7+4*k}], v2, s[40:43], s70 offen offset:{16*k}")
        a("s_lshl_b32 s70, s2, 4")
        a(f"v_mov_b32 v5, s{76+2*(n-1)}")
        a("s_getreg_b32 s71, hwreg(HW_REG_HW_ID)"); a("s_getreg_b32 s72, hwreg(HW_REG_XCC_ID)")
        a("v_mov_b32 v6, s71"); a("v_mov_b32 v7, s72")
        L = a.label("nost")
        a("s_cmp_lg_u32 s3, 0"); a(f"s_cbranch_scc1 {L}")
        a("buffer_store_dwordx4 v[4:7], v2, s[40:43], s70 offen")
        a(f"{L}:")

    a(f"{K}:")
    a("s_cmp_ge_u32 s2, 256")
    a("s_cbranch_scc1 L_end")
    a("s_load_dwordx16 s[16:31], s[0:1], 0")
    a("s_load_dwordx8 s[32:39], s[0:1], 64")
    if stamps:
        for k in range(12): a(f"s_mov_b32 s{76+2*k}, 0")
    stamp(0)
    a("v_lshrrev_b32 v2, 6, v0")
    a("v_and_b32 v1, 63, v0")
    a("v_readfirstlane_b32 s3, v2")
    a("s_and_b32 s4, s2, 7")
    a("s_lshr_b32 s5, s2, 3")
    a("s_and_b32 s8, s5, 1")
    a("s_lshr_b32 s6, s5, 3")
    a("s_bfe_u32 s7, s5, 0x20001")
    a("s_lshl_b32 s7, s7, 3")
    a("s_add_u32 s7, s7, s4")
    a("s_lshl_b32 s9, s6, 6")
    a("s_lshl_b32 s10, s7, 1")
    a("s_add_u32 s9, s9, s10")
    a("s_add_u32 s9, s9, s8")
    a("v_lshlrev_b32 v2, 4, v1")
    a("v_lshrrev_b32 v3, 4, v1")
    a("s_cmp_ge_u32 s3, 4")
    a("s_cbranch_scc1 L_streamer")

    WB = 64
    a("v_and_b32 v4, 15, v1")
    a("v_lshlrev_b32 v5, 13, v3")
    a("v_lshl_add_u32 v5, v4, 4, v5")
    a("v_add_u32 v40, 0x8000, v5"); a("v_add_u32 v41, 0x10000, v5"); a("v_add_u32 v42, 0x18000, v5")
    a("s_lshl_b32 s10, s7, 8")
    a("s_lshl_b32 s14, s3, 20")
    a("s_add_u32 s10, s10, s14")
    a("s_lshl_b32 s12, s6, 10")
    a("s_lshl_b32 s13, s6, 1"); a("s_add_u32 s13, s13, s8")
    a("s_lshl_b32 s56, s13, 17")
    for i in range(1, 8):
        a(f"s_add_u32 s{56+i}, s{55+i}, 0x20000"); a(f"s_and_b32 s{56+i}, s{56+i}, 0xfffff")
    a("s_waitcnt lgkmcnt(0)")
    srd(44, 16, 0, 4096)
    a("buffer_load_dwordx4 v[8:11], v2, s[44:47], s12 offen nt")
    srd(40, 22, "s10", 0 if 'q' in abl else 127 * 8192 + 256)
    def qload(n):
        i, j = divmod(n, 4)
        a(f"buffer_load_dwordx4 v[{WB+4*n}:{WB+4*n+3}], v{(5,40,41,42)[j]}, s[40:43], s{56+i} offen {wflags}")
    for n in range(DQ): qload(n)
    masks(12, "v1", "v6", "v7")
    a("v_lshrrev_b32 v6, 2, v4"); a("v_lshlrev_b32 v6, 3, v6"); a("v_lshl_add_u32 v6, v3, 1, v6")
    a("s_lshl_b32 s15, s3, 8"); a("s_add_u32 s15, s15, s12"); a("v_add_u32 v6, s15, v6")
    for i in range(8):
        a(f"s_lshr_b32 s15, s{56+i}, 12")
        a(f"v_add_u32 v{44+i}, s15, v6")
    a("v_lshlrev_b32 v6, 5, v4"); a("v_lshl_add_u32 v6, v3, 4, v6")
    a("s_lshl_b32 s15, s3, 9"); a("v_add_u32 v6, s15, v6")
    a("v_add_u32 v7, s12, v2")
    a(f"s_waitcnt vmcnt({DQ})")
    stamp(1)
    for l in layernorm(8, 16, 24, "v7", L_XN): a(l)
    a("s_waitcnt lgkmcnt(0)")
    for i in range(8): a(f"ds_read_u16 v{16+i}, v{44+i} offset:{L_XN}")
    a("s_waitcnt lgkmcnt(0)")
    for i in range(8): a(f"v_lshl_or_b32 v{16+i}, v{16+i}, 16, v{16+i}")
    stamp(2)
    def qands(n):
        i, j = divmod(n, 4); A = 24 + 4 * (n & 1)
        for jj in range(4):
            a(f"v_and_b32_dpp v{A+jj}, v{16+i}, v{12+jj} row_newbcast:{4*j} {DPPF}")
    qands(0)
    for n in range(32):
        a(f"s_waitcnt vmcnt({min(DQ - 1, 31 - n)})")
        if n + DQ < 32: qload(n + DQ)
        A = 24 + 4 * (n & 1)
        if n < 31: qands(n + 1)
        a(f"v_mfma_f32_16x16x32_bf16 v[32:35], v[{A}:{A+3}], v[{WB+4*n}:{WB+4*n+3}], " + ("0" if n == 0 else "v[32:35]"))
    a("s_mov_b32 exec_hi, 0")
    a(f"ds_write_b128 v6, v[32:35] offset:{L_QP}")
    a("s_mov_b64 exec, -1")
    a("s_waitcnt lgkmcnt(0)")
    stamp(3)
    a("s_barrier")
    a("s_branch L_helper2")

    a("L_streamer:")
    KB, VB = 80, 208
    AV = 7
    a("s_sub_u32 s11, s3, 4")
    a("s_lshl_b32 s12, s11, 10")
    a("v_mov_b32 v4, v3")
    a("v_bfe_u32 v5, v1, 2, 2")
    a("v_and_b32 v6, 3, v1")
    a("v_lshlrev_b32 v3, 6, v4")
    a("v_lshl_add_u32 v3, v5, 8, v3")
    a("v_lshl_add_u32 v3, v6, 4, v3")
    a("s_lshl_b32 s10, s9, 20")
    a(f"s_lshl_b32 s48, s11, {12 if AG == 4 else 10}")
    a("s_mov_b32 s49, s48")
    a("s_waitcnt lgkmcnt(0)")
    srd(40, 18, "s10", 0x100000)
    def ld(kind, idx, slot):
        base, voff, srdn, so = (KB, "v3", 40, "s48") if kind == 'K' else (VB, "v2", 44, "s49")
        r = base + 4 * slot
        if AG == 4:
            a(f"buffer_load_dwordx4 v[{r}:{r+3}], {voff}, s[{srdn}:{srdn+3}], {so} offen offset:{1024*(idx&3)} {kvflags}")
            if idx & 3 == 3: a(f"s_add_u32 {so}, {so}, 0x4000")
        else:
            a(f"buffer_load_dwordx4 v[{r}:{r+3}], {voff}, s[{srdn}:{srdn+3}], {so} offen {kvflags}")
            a(f"s_add_u32 {so}, {so}, 0x1000")
    for n in range(D): ld('K', n, n)
    srd(44, 16, 0, 4096)
    a("buffer_load_dwordx4 v[32:35], v2, s[44:47], s12 offen nt")
    stamp(1)
    start = len(a.lines)
    srd(44, 20, "s10", 0x100000)
    a("v_lshlrev_b32 v11, 7, v4")
    a("v_lshl_add_u32 v11, v6, 5, v11")
    a("v_cmp_eq_u32 s[66:67], 0, v5"); a("v_cmp_eq_u32 s[68:69], 1, v5"); a("v_cmp_eq_u32 s[72:73], 2, v5"); a("v_cmp_eq_u32 s[74:75], 3, v5")
    a("v_and_b32 v58, 1, v1"); a("v_cmp_eq_u32 s[62:63], 1, v58")
    a("v_and_b32 v58, 2, v1"); a("v_cmp_eq_u32 s[64:65], 2, v58")
    a("v_and_b32 v58, 15, v1"); a("v_lshlrev_b32 v58, 4, v58"); a("v_lshl_add_u32 v70, v4, 3, v58")
    a("s_lshl_b32 s58, s11, 8"); a("v_add_u32 v70, s58, v70")
    masks(4, "v1", "v58", "v59")
    a(f"s_lshl_b32 s58, s11, 14"); a(f"s_add_u32 s58, s58, {L_P - 1024}"); a("v_add_u32 v8, s58, v2")
    a(f"s_lshl_b32 s58, s11, 12"); a(f"s_add_u32 s58, s58, {L_AL - 256}"); a("v_lshlrev_b32 v9, 2, v1"); a("v_add_u32 v9, s58, v9")
    a("v_mov_b32 v10, 0")
    if itst: a("v_mov_b32 v73, 0")
    for i in range(4): a(f"v_mov_b32 v{12+i}, 0")
    a("s_mov_b32 s57, 0xff7fffff")
    a(f"s_mov_b32 s60, {hex(SCALE)}")
    a("s_mov_b32 s56, 0")
    a(f"v_mov_b32 v71, {L_IT}")
    a("ds_write_b64 v71, v[12:13]")
    a("v_add_u32 v59, s12, v2")
    setup = a.lines[start:]; del a.lines[start:]
    lnc = layernorm(32, 36, 44, "v59", L_XN)
    for l in setup: a(l)
    per = -(-len(lnc) // max(1, (BQ - 2 * D - 1)))
    for n in range(D, BQ):
        a(f"s_waitcnt vmcnt({D if n < 2 * D else D - 1})")
        ld('K', n, n)
        if n >= 2 * D:
            for l in lnc[:per]: a(l)
            lnc = lnc[per:]
    assert not lnc
    a("s_waitcnt lgkmcnt(0)")
    stamp(2)
    a("s_barrier")
    stamp(3)
    rest = list(range(BQ, A0))
    def pk():
        if rest:
            n = rest.pop(0); a(f"s_waitcnt vmcnt({D-1})"); ld('K', n, n)
    for hw in range(4):
        a(f"ds_read_b128 v[{32+8*hw}:{35+8*hw}], v11 offset:{L_QP+512*hw}")
        a(f"ds_read_b128 v[{36+8*hw}:{39+8*hw}], v11 offset:{L_QP+512*hw+16}")
    pk()
    a("s_waitcnt lgkmcnt(4)")
    for i in range(8): a(f"v_add_f32 v{32+i}, v{32+i}, v{40+i}")
    a("s_waitcnt lgkmcnt(0)")
    for i in range(8): a(f"v_add_f32 v{48+i}, v{48+i}, v{56+i}")
    pk()
    for i in range(8): a(f"v_add_f32 v{32+i}, v{32+i}, v{48+i}")
    for i in range(4): a(f"v_cvt_pk_bf16_f32 v{40+i}, v{32+2*i}, v{33+2*i}")
    pk()
    for j in range(4):
        m = (66, 68, 72, 74)[j]
        for i in range(4): a(f"v_cndmask_b32 v{16+4*j+i}, 0, v{40+i}, s[{m}:{m+1}]")
    for r in (44, 45, 46, 47, 48, 49, 50): a(f"v_mov_b32 v{r}, 0xff800000")
    while rest: pk()
    a("s_mov_b64 vcc, 0")
    sched = {k: [] for k in range(32)}
    for t in range(4):
        Dr = 32 + 4 * t
        sched[4*t+6] += [f"v_cndmask_b32 v58, v{Dr}, v{Dr+1}, s[62:63]", f"v_cndmask_b32 v59, v{Dr+2}, v{Dr+3}, s[62:63]", f"v_cndmask_b32 v{48+t}, v58, v59, s[64:65]"]
        sched[4*t+7] += [f"v_add_f32_dpp v{48+t}, v{48+t}, v{48+t} quad_perm:[1,0,3,2] {DPPF}"]
        sched[4*t+8] += [f"v_add_f32_dpp v{48+t}, v{48+t}, v{48+t} quad_perm:[2,3,0,1] {DPPF}"]
    def rpair(t):
        return [f"v_cvt_pk_bf16_f32 v57, v{48+t}, v{49+t}", f"v_lshlrev_b32 v{52+t}, 16, v57", f"v_and_b32 v{53+t}, 0xffff0000, v57",
                f"v_mul_f32 v{52+t}, s60, v{52+t}", f"v_mul_f32 v{53+t}, s60, v{53+t}",
                f"v_cvt_pk_bf16_f32 v57, v{52+t}, v{53+t}", f"v_lshlrev_b32 v{52+t}, 16, v57", f"v_and_b32 v{53+t}, 0xffff0000, v57"]
    r0, r2 = rpair(0), rpair(2)
    sched[16] += r0[:4]; sched[17] += r0[4:]
    sched[19] += ["v_max3_f32 v60, v52, v53, s57", "v_mov_b32 v56, s57"]
    sched[21] += r2[:5]; sched[22] += r2[5:] + ["v_max3_f32 v60, v60, v54, v55"]
    sched[23] += [f"v_max_f32_dpp v60, v60, v60 row_half_mirror {DPPF}"]
    sched[24] += [f"v_max_f32_dpp v60, v60, v60 row_mirror {DPPF}"]
    sched[25] += ["v_max_f32_dpp v60, v60, v60 row_bcast:15 row_mask:0xa bank_mask:0xf", "s_nop 1", "v_max_f32_dpp v60, v60, v60 row_bcast:31 row_mask:0xc bank_mask:0xf"]
    sched[26] += ["v_readlane_b32 s57, v60, 63"]
    sched[27] += [f"v_subrev_f32 v{r}, s57, v{r}" for r in (56, 52, 53, 54, 55)]
    sched[28] += [f"v_mul_f32 v{r}, {hex(LOG2E)}, v{r}" for r in (56, 52, 53, 54, 55)]
    sched[29] += [f"v_exp_f32 v{r}, v{r}" for r in (56, 52, 53, 54, 55)]
    sched[30] += ["v_fma_f32 v10, v10, v56, v52", "v_add_f32 v60, v53, v54", "v_add_f32 v10, v10, v55", "v_add_f32 v10, v10, v60", "ds_write_b32 v9, v56"]
    sched[31] += [f"v_cvt_pk_bf16_f32 v{52+t}, v{52+t}, v{52+t}" for t in range(4)] + ["ds_write_b128 v8, v[52:55]", "v_add_u32 v9, 0x100, v9", "v_add_u32 v8, 0x400, v8"]
    k0 = 32 - A0
    vsteps = [k0 + i for i in range(D)] + [k0 + D + 6 + 8 * i for i in range(AV - D)]
    assert max(vsteps) < 32 and len(vsteps) == AV
    a(".p2align 6")
    a("L_kloop:")
    for n in range(32):
        if n >= k0:
            L = a.label("ks"); a(f"s_cbranch_vccnz {L}")
        a(f"s_waitcnt vmcnt({D-1})")
        ld('K', n + A0, (n + A0) % 32)
        if n >= k0:
            if n in vsteps:
                L2 = a.label("kv"); a(f"s_branch {L2}")
                a(f"{L}:")
                a(f"s_waitcnt vmcnt({DV-1})")
                vi = vsteps.index(n); ld('V', vi, vi)
                a(f"{L2}:")
            else:
                a(f"{L}:")
        t, j = (n >> 2) & 3, n & 3
        Dr = 32 + 4 * t
        a(f"v_mfma_f32_16x16x32_bf16 v[{Dr}:{Dr+3}], v[{KB+4*n}:{KB+4*n+3}], v[{16+4*j}:{19+4*j}], " + ("0" if j == 0 else f"v[{Dr}:{Dr+3}]"))
        for op in sched[(n & 15) + 16] + sched[n & 15]: a(op)
        if n == 15 or n == 31:
            if itst:
                a("s_memrealtime s[100:101]"); a("s_mov_b32 m0, s56"); a("s_waitcnt lgkmcnt(0)"); a("v_writelane_b32 v73, s100, m0")
            a("s_add_u32 s56, s56, 1")
    a("v_mov_b32 v72, s56")
    a("ds_write_b32 v71, v72")
    a("s_cmp_eq_u32 s56, 14")
    a("s_cselect_b64 vcc, -1, 0")
    a("s_cmp_lt_u32 s56, 16")
    a("s_cbranch_scc1 L_kloop")
    for k in range(16, 32):
        for op in sched[k]: a(op)
    wave_reduce("v_add_f32", "v10", "s58", quads=False)
    a("v_mov_b32 v58, s57"); a("v_mov_b32 v59, s58")
    a("s_lshl_b32 s58, s11, 3"); a("v_mov_b32 v11, s58")
    a(f"ds_write_b64 v11, v[58:59] offset:{L_ST}")
    a("v_mov_b32 v11, 1")
    a(f"ds_add_u32 v71, v11 offset:{L_SC - L_IT}")
    a("v_subrev_u32 v8, 0x4000, v8")
    a("v_subrev_u32 v9, 0x1000, v9")
    a("ds_read_b128 v[48:51], v8")
    a("ds_read_b32 v57, v9")
    stamp(4)
    def ands(n):
        t, j = divmod(n, 4); A = 60 + 4 * (n & 1)
        for jj in range(4):
            a(f"v_and_b32_dpp v{A+jj}, v{52+t}, v{4+jj} row_newbcast:{4*j} {DPPF}")
    a(".p2align 6")
    a("L_vloop:")
    a("s_waitcnt lgkmcnt(0)")
    for t in range(4): a(f"v_mov_b32 v{52+t}, v{48+t}")
    a("v_mov_b32 v56, v57")
    a("ds_read_b128 v[48:51], v8 offset:1024")
    a("ds_read_b32 v57, v9 offset:256")
    a("v_add_u32 v8, 0x400, v8")
    a("v_add_u32 v9, 0x100, v9")
    ands(0)
    for i in range(4): a(f"v_mul_f32 v{12+i}, v56, v{12+i}")
    for n in range(16):
        if n + AV == 16:
            a("s_cmp_eq_u32 s56, 31")
            a("s_cselect_b32 s46, 0, 0x100000")
        a(f"s_waitcnt vmcnt({DV-1})")
        ld('V', n + AV, (n + AV) % 8)
        A = 60 + 4 * (n & 1)
        if n < 15: ands(n + 1)
        a(f"v_mfma_f32_16x16x32_bf16 v[12:15], v[{A}:{A+3}], v[{VB+4*(n%8)}:{VB+4*(n%8)+3}], v[12:15]")
    if itst:
        a("s_memrealtime s[100:101]"); a("s_mov_b32 m0, s56"); a("s_waitcnt lgkmcnt(0)"); a("v_writelane_b32 v73, s100, m0")
    a("s_add_u32 s56, s56, 1")
    a("v_mov_b32 v72, s56")
    a("ds_write_b32 v71, v72")
    a("s_cmp_lt_u32 s56, 32")
    a("s_cbranch_scc1 L_vloop")
    a("v_cvt_pk_bf16_f32 v58, v12, v13")
    a("v_cvt_pk_bf16_f32 v59, v14, v15")
    a("s_mov_b32 exec_hi, 0")
    a(f"ds_write_b64 v70, v[58:59] offset:{L_O}")
    a("s_waitcnt lgkmcnt(0)")
    stamp(5)
    a("s_barrier")
    if itst:
        a("s_add_u32 s40, s38, 0x20000000"); a("s_addc_u32 s41, s39, 0"); a("s_mov_b32 s42, 0x100000"); a("s_mov_b32 s43, 0x20000")
        a("s_lshl_b32 s70, s2, 10"); a("s_lshl_b32 s71, s11, 7"); a("s_add_u32 s70, s70, s71"); a("s_add_u32 s70, s70, 66048")
        a("v_lshlrev_b32 v2, 2, v1")
        a("buffer_store_dword v73, v2, s[40:43], s70 offen")
    dump_stamps(6)
    a("s_endpgm")

    a("L_helper2:")
    srd(48, 38, 0, W_END)
    srd(52, 36, 0, 256)
    a("v_mov_b32 v8, 0")
    if 'glu' in abl: a("s_branch L_wo")
    a("s_cmp_eq_u32 s3, 1"); a("s_cbranch_scc1 L_h1")
    a("s_cmp_lg_u32 s3, 0"); a("s_cbranch_scc1 L_wo")

    a("v_lshlrev_b32 v9, 2, v1"); a("s_lshl_b32 s15, s2, 7")
    a("s_mov_b32 exec_hi, 0")
    a("buffer_store_dword v8, v9, s[48:51], s15 offen sc1")
    a("s_mov_b64 exec, -1")
    a("s_cmp_ge_u32 s5, 28"); a("s_cbranch_scc1 L_h0done")
    gate(G0)
    a("s_mul_i32 s15, s4, 28"); a("s_add_u32 s15, s15, s5"); a("s_lshl_b32 s57, s15, 4")
    srd(40, 28, "s57", 512 * 3584 - 3584 + 16)
    srd(60, 30, "s57", 512 * 3584 - 3584 + 16)
    a("v_mul_u32_u24 v9, 3584, v1")
    n = 0
    for mat in range(2):
        for i in range(8):
            a(f"s_mov_b32 m0, {L_G1 + mat*8192 + i*1024}")
            a(f"s_mov_b32 s15, {i*64*3584}")
            a(f"buffer_load_dwordx4 v9, s[{40 if mat == 0 else 60}:{43 if mat == 0 else 63}], s15 offen {wflags} lds")
            n += 1
            if n % G1B == 0: a("s_waitcnt vmcnt(0)")
    a("v_lshrrev_b32 v6, 2, v4"); a("v_lshlrev_b32 v10, 10, v6"); a("v_lshl_add_u32 v10, v3, 4, v10")
    a("v_lshlrev_b32 v9, 7, v3"); a("v_lshl_add_u32 v9, v6, 4, v9")
    a("v_bfe_u32 v7, v1, 1, 1"); a("v_lshl_add_u32 v9, v7, 13, v9")
    a("v_and_b32 v7, 1, v1"); a("v_lshl_add_u32 v9, v7, 3, v9")
    a("s_waitcnt vmcnt(0)")
    for half in range(4):
        for s in range(4):
            ks = 4 * half + s
            a(f"ds_read_b128 v[{64+8*s}:{67+8*s}], v10 offset:{L_XN + ks*64}")
            a(f"ds_read_b64_tr_b16 v[{68+8*s}:{69+8*s}], v9 offset:{L_G1 + ks*512}")
            a(f"ds_read_b64_tr_b16 v[{70+8*s}:{71+8*s}], v9 offset:{L_G1 + ks*512 + 64}")
        a("s_waitcnt lgkmcnt(0)")
        for s in range(4):
            a(f"v_mfma_f32_16x16x32_bf16 v[32:35], v[{64+8*s}:{67+8*s}], v[{68+8*s}:{71+8*s}], " + ("0" if half == 0 and s == 0 else "v[32:35]"))
    rnd("v32")
    a(f"v_mov_b32_dpp v33, v32 row_ror:8 {DPPF}")
    silu("v32", "v34"); rnd("v32")
    a("v_mul_f32 v32, v32, v33")
    a(f"v_mov_b32_dpp v33, v32 quad_perm:[1,0,3,2] {DPPF}")
    a("v_cvt_pk_bf16_f32 v32, v32, v33")
    a("v_mul_u32_u24 v9, 3584, v3"); a("v_lshl_add_u32 v9, v4, 1, v9")
    a(f"s_add_u32 s15, s57, {W_H}")
    a("s_mov_b32 exec_lo, 0x00550055"); a("s_mov_b32 exec_hi, 0x00550055")
    a("buffer_store_dword v32, v9, s[48:51], s15 offen sc1")
    a("s_mov_b64 exec, -1")
    a("L_h0done:")
    a("s_waitcnt vmcnt(0)")
    a("v_mov_b32 v9, 1"); a("s_lshl_b32 s15, s4, 2")
    a("s_mov_b64 exec, 1")
    a("buffer_atomic_add v9, off, s[52:55], s15 sc1")
    a("s_mov_b64 exec, -1")
    a("s_branch L_wo")

    a("L_h1:")
    gate(G0)
    a("s_mul_i32 s15, s4, 229376"); a("s_lshl_b32 s57, s5, 5"); a("s_add_u32 s15, s15, s57")
    srd(40, 32, "s15", 223 * 1024 + 32)
    a("v_lshrrev_b32 v9, 1, v1"); a("v_lshlrev_b32 v9, 10, v9"); a("v_and_b32 v7, 1, v1"); a("v_lshl_add_u32 v9, v7, 4, v9")
    for i in range(7):
        a(f"s_mov_b32 m0, {L_G2 + i*1024}")
        a(f"s_mov_b32 s15, {i*32768}")
        a(f"buffer_load_dwordx4 v9, s[40:43], s15 offen {wflags} lds")
        a("s_waitcnt vmcnt(0)")

    a("L_wo:")
    stamp(4)
    gate(GW)
    a("s_lshl_b32 s15, s7, 17")
    srd(40, 24, "s15", 0 if 'wo' in abl else 0x20000)
    a("s_lshl_b32 s15, s3, 8"); a("v_add_u32 v5, s15, v5")
    a("s_mov_b32 s58, 0x05040100"); a("s_mov_b32 s59, 0x07060302")
    a("v_lshlrev_b32 v6, 4, v4"); a("v_lshl_add_u32 v6, v3, 2, v6"); a("v_add_u32 v6, s15, v6")
    a("buffer_load_dword v10, v6, s[44:47], s12 offen nt")
    ST = 192
    for s in range(4):
        for j in range(8):
            if j % 4 == 0: a(f"s_mov_b32 s15, {s*32768 + (j//4)*4096}")
            a(f"buffer_load_dwordx4 v[{ST+4*j}:{ST+4*j+3}], v5, s[40:43], s15 offen offset:{(j%4)*1024} {wflags}")
            if (j + 1) % WOB == 0: a("s_waitcnt vmcnt(0)")
        for c in range(4):
            for e in range(2):
                for jj in range(4):
                    a(f"v_perm_b32 v{WB + 32*s + 4*(2*c+e) + jj}, v{ST+4*(2*jj+1)+c}, v{ST+4*(2*jj)+c}, s{58+e}")
    stamp(5)
    a("s_cmp_lg_u32 s3, 1"); a("s_cbranch_scc1 L_fin")
    if 'glu' not in abl:
        a("s_lshl_b32 s58, s4, 2")
        poll("buffer_load_dword v11, off, s[52:55], s58 sc1", "v11", "s_cmp_ge_u32 s71, 32")
        a("v_lshrrev_b32 v12, 2, v4")
        a("v_mul_u32_u24 v15, 3584, v12"); a("v_lshl_add_u32 v15, v3, 4, v15")
        a(f"s_mul_i32 s15, s4, 448"); a(f"s_add_u32 s15, s15, {W_H}")
        for s in range(7):
            a(f"buffer_load_dwordx4 v[{192+8*s}:{195+8*s}], v15, s[48:51], s15 offen offset:{64*s} sc1")
        a("v_lshlrev_b32 v14, 8, v3"); a("v_lshl_add_u32 v14, v12, 5, v14"); a("v_and_b32 v13, 3, v1"); a("v_lshl_add_u32 v14, v13, 3, v14")
        for s in range(7):
            a(f"ds_read_b64_tr_b16 v[{196+8*s}:{197+8*s}], v14 offset:{L_G2 + s*1024}")
            a(f"ds_read_b64_tr_b16 v[{198+8*s}:{199+8*s}], v14 offset:{L_G2 + s*1024 + 128}")
        a("s_waitcnt vmcnt(0) lgkmcnt(0)")
        for s in range(7):
            a(f"v_mfma_f32_16x16x32_bf16 v[32:35], v[{192+8*s}:{195+8*s}], v[{196+8*s}:{199+8*s}], " + ("0" if s == 0 else "v[32:35]"))
        a("v_lshlrev_b32 v14, 11, v3"); a("v_lshl_add_u32 v14, v4, 2, v14")
        a(f"s_lshl_b32 s15, s4, 13"); a("s_lshl_b32 s57, s5, 6"); a("s_add_u32 s15, s15, s57"); a(f"s_add_u32 s15, s15, {W_GP}")
        a("buffer_store_dword v32, v14, s[48:51], s15 offen sc1")
        a("s_waitcnt vmcnt(0)")
        a("v_mov_b32 v11, 1")
        a("s_mov_b64 exec, 1")
        a("buffer_atomic_add v11, off, s[52:55], 0 offset:128 sc1")
        a("s_mov_b64 exec, -1")
        stamp(6)
        gate(G2)
        poll("buffer_load_dword v11, off, s[52:55], 0 offset:128 sc1", "v11", "s_cmp_ge_u32 s71, 256")
        a("v_lshlrev_b32 v14, 5, v1")
        a(f"s_lshl_b32 s15, s6, 11"); a(f"s_add_u32 s15, s15, {W_GP}")
        for sp in range(8):
            if sp: a("s_add_u32 s15, s15, 8192")
            a(f"buffer_load_dwordx4 v[{192+8*sp}:{195+8*sp}], v14, s[48:51], s15 offen sc1")
            a(f"buffer_load_dwordx4 v[{196+8*sp}:{199+8*sp}], v14, s[48:51], s15 offen offset:16 sc1")
        a("s_waitcnt vmcnt(0)")
        for sp in range(1, 8):
            for i in range(8): a(f"v_add_f32 v{192+i}, v{192+i}, v{192+8*sp+i}")
        for i in range(8): rnd(f"v{192+i}")
        for i in range(8): silu(f"v{192+i}", f"v{200+i}")
        for i in range(4): a(f"v_cvt_pk_bf16_f32 v{200+i}, v{192+2*i}, v{193+2*i}")
        a(f"ds_write_b128 v2, v[200:203] offset:{L_G}")
    stamp(7)
    gate(256, word=L_SC, sleep=4)
    a(f"ds_read_b128 v[16:19], v8 offset:{L_ST}")
    a(f"ds_read_b128 v[20:23], v8 offset:{L_ST+16}")
    a("s_waitcnt lgkmcnt(0)")
    a("v_max3_f32 v24, v16, v18, v20"); a("v_max_f32 v24, v24, v22")
    for w in range(4): a(f"v_sub_f32 v{28+w}, v{16+2*w}, v24")
    for w in range(4): a(f"v_mul_f32 v{28+w}, {hex(LOG2E)}, v{28+w}")
    for w in range(4): a(f"v_exp_f32 v{28+w}, v{28+w}")
    a("v_mul_f32 v25, v17, v28")
    for w in range(1, 4): a(f"v_fmac_f32 v25, v{17+2*w}, v{28+w}")
    a("s_lshl_b32 s15, s9, 6"); a(f"s_add_u32 s15, s15, {W_ST}")
    a("s_mov_b64 exec, 1")
    a("buffer_store_dwordx2 v[24:25], off, s[48:51], s15 sc1")
    a("s_mov_b64 exec, -1")
    a("s_xor_b32 s15, s15, 64")
    poll("buffer_load_dwordx2 v[26:27], off, s[48:51], s15 sc1", "v27", "s_cmp_lg_u32 s71, 0", sleep=8)
    a("v_max_f32 v16, v24, v26")
    a("v_sub_f32 v17, v24, v16"); a("v_sub_f32 v18, v26, v16")
    a(f"v_mul_f32 v17, {hex(LOG2E)}, v17"); a(f"v_mul_f32 v18, {hex(LOG2E)}, v18")
    a("v_exp_f32 v17, v17"); a("v_exp_f32 v18, v18")
    a("v_mul_f32 v19, v25, v17"); a("v_fmac_f32 v19, v27, v18")
    a("v_rcp_f32 v19, v19")
    a("v_mul_f32 v19, v19, v17")
    for w in range(4): a(f"v_mul_f32 v{28+w}, v{28+w}, v19")
    a(f"ds_write_b128 v8, v[28:31] offset:{L_F}")

    a("L_fin:")
    a("v_and_b32 v7, 3, v1"); a("v_lshlrev_b32 v7, 8, v7"); a("v_lshl_add_u32 v7, v3, 4, v7")
    a("v_lshlrev_b32 v9, 2, v1")
    a("v_cmp_eq_u32 s[62:63], 1, v3"); a("v_cmp_eq_u32 s[64:65], 2, v3"); a("v_cmp_eq_u32 s[66:67], 3, v3")
    a("s_lshl_b32 s60, s6, 2"); a("s_add_u32 s60, s60, s3")
    a("s_lshl_b32 s61, s60, 7"); a(f"s_add_u32 s61, s61, {W_CNT}")
    a("s_lshl_b32 s60, s60, 9")
    srd(40, 34, 0, 4096)
    a("v_lshlrev_b32 v226, 16, v10"); a("v_and_b32 v227, 0xffff0000, v10")
    a("v_mov_b32 v228, 1")
    a("s_waitcnt lgkmcnt(0)")
    stamp(8)
    a("s_barrier")
    stamp(9)
    for s in range(4): a(f"ds_read_b128 v[{16+4*s}:{19+4*s}], v7 offset:{L_O + 64*s}")
    a(f"ds_read_b128 v[12:15], v8 offset:{L_F}")
    a(f"ds_read_b32 v11, v6 offset:{L_G}")
    def scale(t):
        D = 32 + 4 * t
        a(f"v_mul_f32 v{D}, v{D}, v12")
        for i in range(1, 4): a(f"v_fmac_f32 v{D}, v{D+i}, v{12+i}")
        if t >= 2:
            a(f"v_cndmask_b32 v{32+4*(t&1)}, v{32+4*(t&1)}, v{D}, s[{60+2*(t>>1)}:{61+2*(t>>1)}]")
    for t in range(8):
        D = 32 + 4 * t
        for s in range(4):
            if t == 0: a(f"s_waitcnt lgkmcnt({5-s})")
            B = WB + 32 * s + 4 * t
            a(f"v_mfma_f32_16x16x32_bf16 v[{D}:{D+3}], v[{16+4*s}:{19+4*s}], v[{B}:{B+3}], " + ("0" if s == 0 else f"v[{D}:{D+3}]"))
        if t == 1: a("s_waitcnt lgkmcnt(0)")
        if t >= 2: scale(t - 2)
    scale(6)
    a(f"buffer_atomic_add_f32 v32, v9, s[48:51], s60 offen sc1")
    scale(7)
    a(f"buffer_atomic_add_f32 v36, v9, s[48:51], s60 offen offset:256 sc1")
    a("v_lshlrev_b32 v224, 16, v11"); a("v_and_b32 v225, 0xffff0000, v11")
    a("s_mov_b64 exec, 1")
    a("s_waitcnt vmcnt(0)")
    a("buffer_atomic_add v228, off, s[48:51], s61 sc0 sc1")
    stamp(10)
    a("s_mov_b64 exec, -1")
    a("s_waitcnt vmcnt(0)")
    a("v_readfirstlane_b32 s15, v228")
    a("s_cmp_lg_u32 s15, 63")
    a("s_cbranch_scc1 L_hend")
    a("buffer_load_dword v32, v9, s[48:51], s60 offen sc1")
    a("buffer_load_dword v33, v9, s[48:51], s60 offen offset:256 sc1")
    a("s_waitcnt vmcnt(0)")
    a("v_cvt_pk_bf16_f32 v34, v32, v33")
    a("v_lshlrev_b32 v32, 16, v34"); a("v_and_b32 v33, 0xffff0000, v34")
    a("v_mul_f32 v32, v32, v224"); a("v_mul_f32 v33, v33, v225")
    a("v_cvt_pk_bf16_f32 v34, v32, v33")
    a("v_lshlrev_b32 v32, 16, v34"); a("v_and_b32 v33, 0xffff0000, v34")
    a("v_add_f32 v32, v32, v226"); a("v_add_f32 v33, v33, v227")
    a("v_cvt_pk_bf16_f32 v34, v32, v33")
    a("buffer_store_dword v34, v6, s[40:43], s12 offen")
    a("L_hend:")
    if stamps:
        a("s_waitcnt vmcnt(0)")
        stamp(11)
        dump_stamps(12)
    a("L_end:")
    a("s_endpgm")
    body, nops = a.finish()
    return body, nops

HEADER = open('cdna_kernels/' + NAME + '.s.ref').read().split('; Override')[0]

def write(path, name=NAME, **kw):
    body, nops = gen(name=name, **kw)
    K = f"{name}_kernel"
    txt = HEADER + f"; @launch grid=(256,1,1) block=(512,1,1) lds={L_END}\n"
    txt += f'.amdgcn_target "amdgcn-amd-amdhsa--gfx950"\n.text\n.globl {K}\n.p2align 8\n.type {K},@function\n'
    txt += "\n".join(body) + "\n"
    txt += f'''.section .rodata,"a"
.p2align 6
.amdhsa_kernel {K}
  .amdhsa_next_free_vgpr 256
  .amdhsa_next_free_sgpr 102
  .amdhsa_accum_offset 256
  .amdhsa_group_segment_fixed_size 0
  .amdhsa_kernarg_size 96
  .amdhsa_user_sgpr_count 2
  .amdhsa_user_sgpr_kernarg_segment_ptr 1
  .amdhsa_system_sgpr_workgroup_id_x 1
  .amdhsa_float_denorm_mode_32 3
.end_amdhsa_kernel
'''
    open(path, 'w').write(txt)
    print(f"wrote {path}: {len(body)} lines, {nops} nop states inserted")

if __name__ == "__main__":
    kw = eval("dict(" + (sys.argv[2] if len(sys.argv) > 2 else "") + ")")
    write(sys.argv[1] if len(sys.argv) > 1 else f"cdna_kernels/{NAME}.s", **kw)
```

```python
import sys
META_HEAD = "\n.amdgpu_metadata\n---\namdhsa.version: [1, 2]\namdhsa.kernels:\n"
META_K = """  - .name: {name}
    .symbol: {name}.kd
    .kernarg_segment_size: 96
    .kernarg_segment_align: 8
    .group_segment_fixed_size: 0
    .private_segment_fixed_size: 0
    .wavefront_size: 64
    .sgpr_count: 96
    .vgpr_count: {vgpr}
    .max_flat_workgroup_size: {wg}
    .args:
      - {{.name: kernargs, .size: 96, .offset: 0, .value_kind: by_value}}
"""
META_TAIL = "...\n.end_amdgpu_metadata\n"
def tail(a, name):
    a("  s_nop 7"); a("  s_nop 7")
    a("  s_barrier")
    a("  s_memrealtime s[42:43]")
    a("  s_waitcnt lgkmcnt(0)")
    a("  s_cmp_lg_u32 s12, 0")
    a(f"  s_cbranch_scc1 {name}_end")
    a("  s_add_u32 s24, s8, 0x20000000"); a("  s_addc_u32 s25, s9, 0"); a("  s_mov_b32 s26, 65536"); a("  s_mov_b32 s27, 0x20000")
    a("  s_lshl_b32 s28, s2, 4")
    a("  v_mov_b32 v16, s40"); a("  v_mov_b32 v17, s42")
    a("  s_getreg_b32 s46, hwreg(HW_REG_HW_ID)"); a("  s_getreg_b32 s47, hwreg(HW_REG_XCC_ID)")
    a("  v_mov_b32 v18, s46"); a("  v_mov_b32 v19, s47"); a("  v_mov_b32 v20, 0")
    a("  v_cmp_eq_u32 vcc, 0, v2")
    a("  s_and_saveexec_b64 s[44:45], vcc")
    a("  buffer_store_dwordx4 v[16:19], v20, s[24:27], s28 offen")
    a(f"{name}_end:")
    a("  s_endpgm")
def desc(a, name, nv):
    acc = (nv + 3) // 4 * 4
    a(f'.section .rodata,"a"\n.p2align 6\n.amdhsa_kernel {name}\n  .amdhsa_next_free_vgpr {nv}\n  .amdhsa_next_free_sgpr 90\n  .amdhsa_accum_offset {acc}\n  .amdhsa_group_segment_fixed_size 0\n  .amdhsa_kernarg_size 96\n  .amdhsa_user_sgpr_count 2\n  .amdhsa_user_sgpr_kernarg_segment_ptr 1\n  .amdhsa_system_sgpr_workgroup_id_x 1\n.end_amdhsa_kernel')
def run(kernel):
    exps = eval(open(sys.argv[1]).read())
    body, meta, specs = ['.amdgcn_target "amdgcn-amd-amdhsa--gfx950"'], [], []
    for name, kw in exps:
        b, m, s = kernel(name, **kw)
        body.append(b); meta.append(m); specs.append(s)
    open(sys.argv[2], "w").write("\n".join(body) + META_HEAD + "".join(meta) + META_TAIL)
    open(sys.argv[2] + ".specs", "w").write(" ".join(specs))
```

```python
import sys
from gen_common import *

def kernel(name, W=4, Dp=(5,), AG=1024, order='ph', xmap='hx2', rot=0, flags="nt", lds=90000, perm=False, blk=16, lead=0, gap=0, spf=0, vpf=0):
    nwg = 256; chunk = 1 << 20
    nloads = chunk // 1024 // W
    lpg = AG // 1024
    o = []; a = o.append
    a(f".text\n.globl {name}\n.p2align 8\n.type {name},@function\n{name}:")
    a(f"  s_cmp_ge_u32 s2, {nwg}")
    a(f"  s_cbranch_scc1 {name}_end")
    a("  s_load_dwordx4 s[4:7], s[0:1], 8")
    a("  s_load_dwordx2 s[8:9], s[0:1], 88")
    a("  s_memrealtime s[40:41]")
    if xmap == 'xcd':
        a("  s_and_b32 s10, s2, 7"); a("  s_lshr_b32 s11, s2, 3"); a("  s_lshl_b32 s10, s10, 5"); a("  s_add_u32 s10, s10, s11")
    elif xmap == 'hx1':
        a("  s_and_b32 s10, s2, 7"); a("  s_lshl_b32 s10, s10, 3"); a("  s_lshr_b32 s11, s2, 3"); a("  s_and_b32 s33, s11, 7"); a("  s_add_u32 s10, s10, s33")
        a("  s_lshr_b32 s11, s11, 3"); a("  s_lshl_b32 s11, s11, 6"); a("  s_add_u32 s10, s10, s11")
    elif xmap == 'hx2':
        a("  s_and_b32 s10, s2, 7"); a("  s_lshl_b32 s10, s10, 1"); a("  s_lshr_b32 s11, s2, 3"); a("  s_and_b32 s33, s11, 1"); a("  s_add_u32 s10, s10, s33")
        a("  s_lshr_b32 s11, s11, 1"); a("  s_lshl_b32 s11, s11, 4"); a("  s_add_u32 s10, s10, s11")
    else:
        a("  s_mov_b32 s10, s2")
    a("  v_lshrrev_b32 v1, 6, v0"); a("  v_and_b32 v2, 63, v0"); a("  v_readfirstlane_b32 s12, v1"); a("  v_lshlrev_b32 v3, 4, v2")
    a("  v_lshrrev_b32 v4, 4, v2"); a("  v_bfe_u32 v5, v2, 2, 2"); a("  v_and_b32 v6, 3, v2")
    a("  v_lshlrev_b32 v4, 6, v4"); a("  v_lshl_add_u32 v4, v5, 8, v4"); a("  v_lshl_add_u32 v4, v6, 4, v4")
    a(f"  s_mul_i32 s11, s10, {chunk}")
    a(f"  s_mul_i32 s13, s12, {AG}")
    a("  v_add_u32 v3, s13, v3"); a("  v_add_u32 v4, s13, v4")
    a("  s_waitcnt lgkmcnt(0)")
    a("  s_add_u32 s16, s4, s11"); a("  s_addc_u32 s17, s5, 0"); a(f"  s_mov_b32 s18, {chunk}"); a("  s_mov_b32 s19, 0x20000")
    a("  s_add_u32 s20, s6, s11"); a("  s_addc_u32 s21, s7, 0"); a(f"  s_mov_b32 s22, {chunk}"); a("  s_mov_b32 s23, 0x20000")
    if spf:
        n = chunk // spf
        a(f"  s_mul_i32 s50, s12, {chunk // W}")
        a("  s_add_u32 s52, s16, s50"); a("  s_addc_u32 s53, s17, 0")
        a("  s_add_u32 s54, s20, s50"); a("  s_addc_u32 s55, s21, 0")
        for i in range(max(1, n // W)):
            a(f"  s_load_dword s56, s[52:53], {i*spf}")
            a(f"  s_load_dword s57, s[54:55], {i*spf}")
    if vpf:
        a(f"  v_lshlrev_b32 v7, 14, v2")
        a(f"  buffer_load_dword v250, v7, s[16:19], 0 offen nt")
        a(f"  buffer_load_dword v251, v7, s[20:23], 0 offen nt")
    for r in range(8, 16): a(f"  v_mov_b32 v{r}, 0")
    span = 16 * 1024 * W
    a(f"  s_mul_i32 s14, s10, {rot*span}")
    a(f"  s_and_b32 s14, s14, {chunk-1}")
    a(f"  s_add_u32 s15, s14, {(-lead*span) & (chunk-1)}"); a(f"  s_and_b32 s15, s15, {chunk-1}")
    def off(n): return (n // lpg) * AG * W + (n % lpg) * 1024
    cnt = [0]
    def block(srd, sreg, voff, base):
        for n in range(16):
            d = Dp[cnt[0] % len(Dp)]; cnt[0] += 1
            of = off(n)
            a(f"  s_add_u32 s30, {sreg}, {of & ~4095}")
            a(f"  s_waitcnt vmcnt({d-1})")
            a(f"  buffer_load_dwordx4 v[{base+4*n}:{base+4*n+3}], {voff}, {srd}, s30 offen offset:{of & 4095} {flags}")
            m = (n + 8) % 16
            a(f"  v_mfma_f32_16x16x32_bf16 v[8:11], v[{base+4*m}:{base+4*m+3}], v[12:15], v[8:11]")
            for g in range(gap): a("  v_add_u32 v7, v7, v7")
        if AG <= 16384:
            a(f"  s_add_u32 {sreg}, {sreg}, {span}"); a(f"  s_and_b32 {sreg}, {sreg}, {chunk-1}")
        else:
            a(f"  s_add_u32 {sreg}, {sreg}, 16384")
            a(f"  s_and_b32 s32, {sreg}, {AG-1}")
            a(f"  s_cmp_eq_u32 s32, 0")
            a(f"  s_cselect_b32 s32, {AG*(W-1)}, 0")
            a(f"  s_add_u32 {sreg}, {sreg}, s32")
    nb = nloads // 16
    kv = "v4" if perm else "v3"
    if order == 'ph':
        for srd, sreg, vo, lab in (("s[16:19]", "s14", kv, "k"), ("s[20:23]", "s15", "v3", "v")):
            a(f"  s_mov_b32 s31, {nb}")
            a(f"{name}_{lab}:")
            block(srd, sreg, vo, 16)
            a("  s_sub_u32 s31, s31, 1"); a("  s_cmp_lg_u32 s31, 0"); a(f"  s_cbranch_scc1 {name}_{lab}")
    else:
        a(f"  s_mov_b32 s31, {nb}")
        a(f"{name}_m:")
        block("s[16:19]", "s14", kv, 16)
        block("s[20:23]", "s15", "v3", 80)
        a("  s_sub_u32 s31, s31, 1"); a("  s_cmp_lg_u32 s31, 0"); a(f"  s_cbranch_scc1 {name}_m")
    a("  s_waitcnt vmcnt(0)")
    tail(a, name)
    nv = 256
    desc(a, name, nv)
    return "\n".join(o), META_K.format(name=name, vgpr=nv, wg=W * 64), f"{name}:{nwg}:{W*64}:{lds}"
run(kernel)
```

```python
from gen_common import *
def kernel(name, order, D=5, W=4, rk=None, rsh=0, xm='hx2', perturb=0):
    order = order.split()
    if 'k0' not in order: order = ['k0','k1'] + order
    rest = [f'n{i}' for i in range(8) if f'n{i}' not in order]
    order += rest
    assert sorted(order) == sorted(['k0','k1','w0','w1','h']+[f'n{i}' for i in range(8)]), order
    pos = {s: 8+i for i, s in enumerate(order)}
    nwg=256
    o=[]; a=o.append
    a(f".text\n.globl {name}\n.p2align 8\n.type {name},@function\n{name}:")
    a(f"  s_cmp_ge_u32 s2, {nwg}"); a(f"  s_cbranch_scc1 {name}_end")
    a("  s_load_dwordx4 s[4:7], s[0:1], 8"); a("  s_load_dwordx2 s[8:9], s[0:1], 88"); a("  s_memrealtime s[40:41]")
    a("  s_and_b32 s10, s2, 7"); a("  s_lshr_b32 s11, s2, 3"); a("  s_and_b32 s33, s11, 1"); a("  s_lshr_b32 s11, s11, 1"); a("  s_lshl_b32 s11, s11, 3"); a("  s_add_u32 s10, s10, s11")
    if xm == 'blk':
        a("  s_and_b32 s10, s2, 7"); a("  s_lshl_b32 s10, s10, 4"); a("  s_lshr_b32 s11, s2, 4"); a("  s_add_u32 s10, s10, s11")
    if xm == 'hx1':
        a("  s_and_b32 s10, s2, 7"); a("  s_lshl_b32 s10, s10, 2"); a("  s_bfe_u32 s11, s2, 0x20004"); a("  s_add_u32 s10, s10, s11"); a("  s_lshr_b32 s11, s2, 6"); a("  s_lshl_b32 s11, s11, 5"); a("  s_add_u32 s10, s10, s11")
    a(f"  s_lshr_b32 s36, s10, {rsh}")
    a("  v_lshrrev_b32 v1, 6, v0"); a("  v_and_b32 v2, 63, v0"); a("  v_readfirstlane_b32 s12, v1"); a("  v_and_b32 v3, 15, v2"); a("  v_lshlrev_b32 v3, 4, v3")
    a("  v_bfe_u32 v4, v2, 4, 1"); a(f"  v_lshl_add_u32 v3, v4, {pos['k0']}, v3"); a("  v_bfe_u32 v4, v2, 5, 1"); a(f"  v_lshl_add_u32 v3, v4, {pos['k1']}, v3")
    a("  s_lshl_b32 s11, s10, 21")
    a(f"  s_lshl_b32 s34, s33, {pos['h']}")
    a(f"  s_and_b32 s13, s12, 1"); a(f"  s_lshl_b32 s13, s13, {pos['w0']}"); a("  s_add_u32 s34, s34, s13")
    a(f"  s_lshr_b32 s13, s12, 1"); a(f"  s_lshl_b32 s13, s13, {pos['w1']}"); a("  s_add_u32 s34, s34, s13")
    a("  s_waitcnt lgkmcnt(0)")
    a("  s_add_u32 s16, s4, s11"); a("  s_addc_u32 s17, s5, 0"); a("  s_mov_b32 s18, 0x200000"); a("  s_mov_b32 s19, 0x20000")
    a("  s_add_u32 s20, s6, s11"); a("  s_addc_u32 s21, s7, 0"); a("  s_mov_b32 s22, 0x200000"); a("  s_mov_b32 s23, 0x20000")
    if perturb:
        a("  s_mul_i32 s35, s2, 0x9E3779B1"); a("  s_lshr_b32 s35, s35, 28")
        a(f"{name}_pt:"); a(f"  s_sleep {perturb}"); a("  s_sub_u32 s35, s35, 1"); a("  s_cmp_gt_i32 s35, 0"); a(f"  s_cbranch_scc1 {name}_pt")
    for srd, lab in (("s[16:19]","k"),("s[20:23]","v")):
        a("  s_mov_b32 s31, 0")
        a(f"{name}_{lab}:")
        a("  s_mov_b32 s14, s34")
        if rk == 'add': a("  s_add_u32 s37, s31, s36")
        elif rk == 'xor': a("  s_xor_b32 s37, s31, s36")
        else: a("  s_mov_b32 s37, s31")
        for i in range(4):
            a(f"  s_bfe_u32 s35, s37, {0x10000 | i}"); a(f"  s_lshl_b32 s35, s35, {pos[f'n{4+i}']}"); a("  s_add_u32 s14, s14, s35")
        for n in range(16):
            of = sum(((n >> i) & 1) << pos[f'n{i}'] for i in range(4))
            a(f"  s_add_u32 s30, s14, {of}")
            a(f"  s_waitcnt vmcnt({D-1})")
            a(f"  buffer_load_dwordx4 v[{24+4*(n%8)}:{27+4*(n%8)}], v3, {srd}, s30 offen nt")
        a("  s_add_u32 s31, s31, 1"); a("  s_cmp_lt_u32 s31, 16"); a(f"  s_cbranch_scc1 {name}_{lab}")
    a("  s_waitcnt vmcnt(0)")
    tail(a, name)
    desc(a, name, 64)
    return "\n".join(o), META_K.format(name=name, vgpr=64, wg=W*64), f"{name}:{nwg}:{W*64}:90000"
run(kernel)
```
